```python
import torch

def _softmax(x, axis=-1):
    return torch.softmax(x, dim=axis)

def _gelu(x):
    return torch.nn.functional.gelu(x, approximate='tanh')

def _silu(x):
    return torch.nn.functional.silu(x)

def _sigmoid(x):
    return torch.sigmoid(x)

def _layernorm(x, axis=-1, eps=1e-05):
    m = x.mean(dim=axis, keepdim=True)
    v = x.var(dim=axis, keepdim=True, unbiased=False)
    return (x - m) / torch.sqrt(v + eps)

def _scatter_add(tgt, idx, src, axis=0):
    return tgt.clone().index_add_(axis, idx, src)

def _segment_sum(src, seg, n):
    out = torch.zeros((n,) + src.shape[1:], dtype=src.dtype)
    return out.index_add_(0, seg, src)

def _pad(x, pw):
    flat = tuple((v for pair in reversed(pw) for v in pair))
    return torch.nn.functional.pad(x, flat)
kernel_name = 'sequential_preLN__mha_block__mixer_gmlp__prompt'

def setup_inputs():

    _w = lambda a: (lambda t: t.to(torch.bfloat16) if t.is_floating_point() else t)(torch.as_tensor(a))

    def _A_setup():
        B, S, D, H = (1, 2048, 512, 32)
        return {'x': _w((lambda *s: torch.randn(*s, dtype=torch.bfloat16) * 0.05)(B, S, D)), 'wqkv': _w((lambda *s: torch.randn(*s, dtype=torch.bfloat16) * 0.05)(D, 3 * D)), 'wo': _w((lambda *s: torch.randn(*s, dtype=torch.bfloat16) * 0.05)(D, D))}
    _A_in = _A_setup()

    def _B_setup():
        B, S, D, F = (1, 2048, 512, 1792)
        Fh = F // 2
        return {'x': _w((lambda *s: torch.randn(*s, dtype=torch.bfloat16) * 0.05)(B, S, D)), 'w_in': _w((lambda *s: torch.randn(*s, dtype=torch.bfloat16) * 0.4)(D, 2 * Fh)), 'w_sp': _w(0.01 * (lambda *s: torch.randn(*s, dtype=torch.bfloat16) * 0.4)(S, S)), 'b_sp': _w(1.0 + 0.01 * (lambda *s: torch.randn(*s, dtype=torch.bfloat16) * 0.05)(S)), 'w_out': _w((lambda *s: torch.randn(*s, dtype=torch.bfloat16) * 0.05)(Fh, D))}
    _B_in = _B_setup()
    return {'A_x': _A_in['x'], 'A_wqkv': _A_in['wqkv'], 'A_wo': _A_in['wo'], 'B_x': _B_in['x'], 'B_w_in': _B_in['w_in'], 'B_w_sp': _B_in['w_sp'], 'B_b_sp': _B_in['b_sp'], 'B_w_out': _B_in['w_out']}

def reference(A_x, A_wqkv, A_wo, B_x, B_w_in, B_w_sp, B_b_sp, B_w_out):

    def _A_ref(x, wqkv, wo):
        B, S, D = x.shape
        H = 32
        Dh = D // H
        qkv = (lambda x, *d: x.permute(*d))((x @ wqkv).reshape(B, S, 3, H, Dh), 2, 0, 3, 1, 4)
        q, k, v = (qkv[0], qkv[1], qkv[2])
        scores = torch.einsum('bhqd,bhkd->bhqk', q, k) * Dh ** (-0.5)
        p = _softmax(scores, axis=-1)
        o = torch.einsum('bhqk,bhkd->bhqd', p, v)
        return (lambda x, *d: x.permute(*d))(o, 0, 2, 1, 3).reshape(B, S, D) @ wo

    def _B_ref(x, w_in, w_sp, b_sp, w_out):
        B, S, D = x.shape
        F = w_in.shape[-1]
        Fh = F // 2
        z = _gelu(torch.einsum('bsd,df->bsf', x, w_in))
        z1 = z[..., :Fh].clone()
        z2 = _layernorm(z[..., Fh:], axis=-1)
        g = torch.einsum('ts,bsf->btf', w_sp, z2) + b_sp[None, :, None]
        return torch.einsum('bsf,fd->bsd', z1 * g, w_out)
    x = A_x
    h = x + _A_ref(_layernorm(x, axis=-1), A_wqkv, A_wo)
    h2 = h + _B_ref(_layernorm(h, axis=-1), B_w_in, B_w_sp, B_b_sp, B_w_out)
    return h2
```

```python
import re

def v(i, n=1):
    return f"v{i}" if n == 1 else f"v[{i}:{i+n-1}]"
def a(i, n=1):
    return f"a{i}" if n == 1 else f"a[{i}:{i+n-1}]"
def s(i, n=1):
    return f"s{i}" if n == 1 else f"s[{i}:{i+n-1}]"
def r(i, n=1):
    if i >= 256:
        return a(i - 256, n)
    assert i + n <= 256, (i, n)
    return v(i, n)

_REG = re.compile(r"^(-|abs\()?\s*([vas])(?:(\d+)|\[(\d+):(\d+)\])\)?$")

def parse_reg(tok):
    tok = tok.strip()
    if tok in ("vcc",): return [("s", 106), ("s", 107)]
    if tok == "vcc_lo": return [("s", 106)]
    if tok == "vcc_hi": return [("s", 107)]
    if tok == "exec": return [("s", 126), ("s", 127)]
    if tok == "exec_lo": return [("s", 126)]
    if tok == "exec_hi": return [("s", 127)]
    if tok == "m0": return [("s", 124)]
    m = _REG.match(tok)
    if not m: return []
    k = m.group(2)
    if m.group(3) is not None:
        lo = hi = int(m.group(3))
    else:
        lo, hi = int(m.group(4)), int(m.group(5))
    return [(k, i) for i in range(lo, hi + 1)]

TRANS = ("v_exp_", "v_log_", "v_rcp_", "v_rsq_", "v_sqrt_", "v_sin_", "v_cos_")

class Ins:
    __slots__ = ("text", "op", "cls", "rd", "wr", "a", "b", "c", "passes", "dpp", "states", "storedata", "ldsdma")
    def __init__(self, text):
        self.text = text
        t = text.split(";")[0].strip()
        parts = t.split(None, 1)
        self.op = op = parts[0]
        rest = parts[1] if len(parts) > 1 else ""
        ops, depth, cur = [], 0, ""
        for ch in rest:
            if ch == "[": depth += 1
            if ch == "]": depth -= 1
            if ch == "," and depth == 0:
                ops.append(cur.strip()); cur = ""
            else:
                cur += ch
        if cur.strip(): ops.append(cur.strip())
        mods = ""
        if ops:
            pieces = ops[-1].split()
            ops[-1] = pieces[0]
            mods = " ".join(pieces[1:])
        R = [parse_reg(o) for o in ops]
        self.rd, self.wr = [], []
        self.a = self.b = self.c = []
        self.passes = 0
        self.dpp = False
        self.states = 1
        self.storedata = []
        self.ldsdma = False
        if op == "s_nop":
            self.cls = "nop"; self.states = int(ops[0], 0) + 1
        elif op.startswith("v_mfma"):
            self.cls = "mfma"
            self.wr = R[0]; self.a, self.b, self.c = R[1], R[2], R[3]
            self.rd = R[1] + R[2] + R[3]
            self.passes = 8 if "32x32" in op else 4
        elif op.startswith("v_"):
            self.cls = "trans" if op.startswith(TRANS) else "valu"
            self.dpp = ("dpp" in op) or ("row_" in mods) or ("quad_perm" in mods)
            if op.startswith("v_cmp"):
                self.wr = R[0]; self.rd = sum(R[1:], [])
                if op.startswith("v_cmpx"): self.wr = self.wr + parse_reg("exec")
            elif op.startswith("v_permlane") and "swap" in op:
                self.wr = R[0] + R[1]; self.rd = R[0] + R[1]
            elif op.startswith(("v_add_co", "v_sub_co", "v_addc_co", "v_subb_co", "v_div_scale", "v_mad_u64")):
                self.wr = R[0] + R[1]; self.rd = sum(R[2:], [])
            else:
                self.wr = R[0]; self.rd = sum(R[1:], [])
                if op.startswith(("v_fmac", "v_pk_fmac", "v_dot2c", "v_writelane")) or self.dpp or "sdwa" in op:
                    self.rd = self.rd + R[0]
                if op.startswith("v_cndmask") and len(R) == 3:
                    self.rd = self.rd + parse_reg("vcc")
        elif op.startswith(("buffer_", "global_", "flat_")):
            self.cls = "vmem"
            lds = (" lds" in " " + mods) or ("_lds_" in op)
            self.ldsdma = lds
            if op.startswith(("buffer_wbl2", "buffer_inv")):
                pass
            elif "load" in op and not lds:
                self.wr = R[0]; self.rd = sum(R[1:], [])
            elif "load" in op:
                self.rd = sum(R, []) + parse_reg("m0")
            elif op.startswith("buffer_"):
                self.rd = sum(R, []); self.storedata = R[0]
                if "atomic" in op and "sc0" in mods: self.wr = R[0]
            else:
                self.rd = sum(R, [])
                if "atomic" in op and "sc0" in mods:
                    self.wr = R[0]; self.storedata = R[2]
                else:
                    self.storedata = R[1]
        elif op.startswith("ds_"):
            self.cls = "ds"
            if "read" in op or "permute" in op or "swizzle" in op:
                self.wr = R[0]; self.rd = sum(R[1:], [])
            else:
                self.rd = sum(R, [])
        elif op.startswith("s_"):
            self.cls = "salu"
            if op.startswith(("s_waitcnt", "s_barrier", "s_endpgm", "s_branch", "s_cbranch", "s_setprio", "s_sleep", "s_cmp", "s_bitcmp")):
                self.rd = sum(R, [])
            elif op.startswith(("s_load", "s_memtime", "s_memrealtime", "s_buffer_load")):
                self.cls = "smem"; self.wr = R[0]; self.rd = sum(R[1:], [])
            else:
                self.wr = R[0]; self.rd = sum(R[1:], [])
                if "saveexec" in op: self.wr = self.wr + parse_reg("exec")
        else:
            raise ValueError("unknown instr: " + text)

def need(p, c):
    n = 0
    pw, pr = set(p.wr), set(p.rd)
    cr, cw = set(c.rd), set(c.wr)
    isvalu = lambda x: x.cls in ("valu", "trans")
    if isvalu(p):
        vw = {x for x in pw if x[0] in "va"}
        sw = {x for x in pw if x[0] == "s"}
        if c.cls == "mfma" and vw & cr: n = max(n, 2)
        if p.op.startswith("v_dot2") and (vw & (cr | cw)):
            if c.op == p.op and not (vw & set(c.rd[:2])): pass
            else: n = max(n, 3)
        if p.cls == "trans" and c.cls == "valu" and vw & cr: n = max(n, 1)
        if isvalu(c) and c.dpp and vw & cr: n = max(n, 2)
        if c.op.startswith("v_permlane") and vw & cr: n = max(n, 2)
        if c.op.startswith(("v_readlane", "v_readfirstlane")) and vw & cr: n = max(n, 1)
        if ("sdwa" in p.op or "op_sel" in p.text) and isvalu(c) and vw & (cr | cw): n = max(n, 1)
        if sw:
            if isvalu(c) and sw & cr: n = max(n, 4 if c.op.startswith(("v_readlane", "v_writelane", "v_div_fmas")) else 2)
            if c.cls == "vmem" and sw & cr: n = max(n, 5)
            if ("s", 126) in sw:
                if c.cls == "mfma": n = max(n, 4)
                if isvalu(c) and c.dpp: n = max(n, 5)
                if c.op.startswith(("v_readlane", "v_readfirstlane", "v_writelane", "v_permlane")): n = max(n, 4)
            if c.cls in ("salu", "smem") and sw & cr: n = max(n, 1)
    if p.cls == "mfma":
        big = p.passes == 8
        if c.cls == "mfma":
            if pw & (set(c.a) | set(c.b)): n = max(n, 12 if big else 8)
            if pw & set(c.c):
                if not (p.wr == c.c and p.passes == c.passes): n = max(n, 10 if big else 6)
            elif pw & cw and not (p.wr == c.wr and p.passes == c.passes):
                n = max(n, 12 if big else 8)
        else:
            if c.cls in ("valu", "trans", "vmem", "ds") and pw & (cr | cw): n = max(n, 12 if big else 8)
            if isvalu(c) and set(p.c) & cw: n = max(n, 7 if big else 3)
    if p.cls == "salu" and ("s", 124) in pw and (c.ldsdma or "addtid" in c.op): n = max(n, 1)
    if p.cls == "vmem" and len(p.storedata) >= 3 and set(p.storedata) & cw:
        n = max(n, 2 if isvalu(c) else 1)
    return n

class Asm:
    def __init__(self):
        self.items = []
    def __call__(self, text):
        for line in text.split("\n"):
            line = line.strip()
            if not line: continue
            if line.startswith(";") or line.startswith(".") or line.endswith(":"):
                self.items.append(line)
            else:
                self.items.append(Ins(line))
    def label(self, name): self.items.append(name + ":")
    def raw(self, text): self.items.append(text)
    def finish(self):
        items = self.items
        islabel = lambda it: isinstance(it, str) and it.endswith(":") and not it.startswith((";", "."))
        srcs = {}
        for i, it in enumerate(items):
            if isinstance(it, Ins) and it.op.startswith(("s_branch", "s_cbranch")):
                tgt = it.text.split(";")[0].split()[1]
                srcs.setdefault(tgt, []).append(i)
        out = []
        pos = {}
        def maxneed(lst, idx, c, dist, depth, via_branch):
            best = 0
            j = idx - 1
            first = True
            while j >= 0 and dist < 20:
                it = lst[j]
                if isinstance(it, str):
                    if islabel(it) and depth < 3:
                        for sidx in srcs.get(it[:-1], []):
                            if sidx in pos:
                                best = max(best, maxneed(out, pos[sidx] + 1, c, dist, depth + 1, True))
                            else:
                                best = max(best, maxneed(items, sidx + 1, c, dist, depth + 1, True))
                    j -= 1; continue
                if it.op == "s_endpgm": break
                if it.op == "s_branch" and not (first and via_branch): break
                first = False
                best = max(best, need(it, c) - dist)
                dist += it.states
                j -= 1
            return best
        self.nops = 0
        for i, it in enumerate(items):
            if isinstance(it, Ins) and it.cls != "nop":
                n = maxneed(out, len(out), it, 0, 0, False)
                self.nops += max(n, 0)
                while n > 0:
                    k = min(n, 16)
                    out.append(Ins(f"s_nop {k-1}"))
                    n -= k
            pos[i] = len(out)
            out.append(it)
        self.items = out
        return "\n".join((it if (isinstance(it, str)) else "    " + it.text) for it in out) + "\n"
```

```python
from asmlib import *

NAME = "sequential_preLN__mha_block__mixer_gmlp__prompt"
KA_X, KA_WQKV, KA_WO, KA_BX, KA_WIN, KA_WSP, KA_BSP, KA_WOUT, KA_OUT, KA_DBG, KA_WS = [8 * i for i in range(11)]
S, D, H, DH, FH = 2048, 512, 32, 16, 896
WS_QF = 0x000000
WS_KF = 0x200000
WS_VF = 0x400000
WS_KN = 0x600000
WS_OF = 0x700000
WS_HF = 0x900000
WS_Z2 = 0xB00000
WS_Z1 = 0xF00000
WS_Y  = 0x1300000
WS_SY = 0x1700000
WS_ST3 = WS_SY
WS_ST4 = WS_SY + 0x40000
WS_FC = WS_SY + 0x60000
WS_FD = WS_SY + 0x64000
WS_FO = WS_SY + 0x68000
SPIN_MAX = 100000
WS_SIZE = 0x2000000

LOG2E = 1.4426950408889634
import struct
def f32(x):
    return "0x%08x" % struct.unpack("<I", struct.pack("<f", x))[0]

def srd(A, d, base, nbytes, off=0):
    if off:
        A(f"s_add_u32 s{d}, s{base}, {hex(off)}")
        A(f"s_addc_u32 s{d+1}, s{base+1}, 0")
    else:
        A(f"s_mov_b32 s{d}, s{base}")
        A(f"s_mov_b32 s{d+1}, s{base+1}")
    A(f"s_mov_b32 s{d+2}, {hex(nbytes)}")
    A(f"s_mov_b32 s{d+3}, 0x00020000")

def kernel_head(A, name):
    A.raw(".text")
    A.raw(f".globl {name}")
    A.raw(".p2align 8")
    A.raw(f".type {name},@function")
    A.label(name)

def kernel_desc(name, vgpr, agpr=0, sgpr=102):
    acc = (vgpr + 3) // 4 * 4
    nfv = acc + agpr if agpr else vgpr
    return f""".section .rodata,"a"
.p2align 6
.amdhsa_kernel {name}
  .amdhsa_next_free_vgpr {nfv}
  .amdhsa_next_free_sgpr {sgpr}
  .amdhsa_accum_offset {acc}
  .amdhsa_group_segment_fixed_size 0
  .amdhsa_kernarg_size 88
  .amdhsa_user_sgpr_count 2
  .amdhsa_user_sgpr_kernarg_segment_ptr 1
  .amdhsa_system_sgpr_workgroup_id_x 1
.end_amdhsa_kernel
"""

class VAlloc:
    def __init__(self, start=0, limit=256):
        self.n = start; self.limit = limit; self.hi = start
    def __call__(self, n=1, align=None):
        al = align or (4 if n >= 4 else (2 if n >= 2 else 1))
        self.n = (self.n + al - 1) // al * al
        x = self.n
        self.n += n
        assert self.n <= self.limit, "out of registers"
        self.hi = max(self.hi, self.n)
        return x

import os
STAMP = bool(int(os.environ.get("STAMP", "0")))
WS_STAMP = 0x1900000
def stamp(A, slot):
    if not STAMP: return
    b = 60 + 4 * slot
    A(f"s_memrealtime s[{b}:{b+1}]")
    A(f"s_memtime s[{b+2}:{b+3}]")
    A("s_waitcnt lgkmcnt(0)")
def stamp_flush(A, name, kidx, nslots):
    if not STAMP: return
    A("s_mov_b64 exec, -1")
    A("s_waitcnt vmcnt(0)")
    stamp(A, nslots)
    A(f"s_load_dwordx2 s[98:99], s[0:1], {KA_WS}")
    A("s_lshl_b32 s100, s2, 7")
    A(f"s_add_u32 s100, s100, {hex(WS_STAMP + kidx*32768)}")
    A("v_mov_b32 v3, s100")
    A("v_cmp_eq_u32 vcc, 0, v0")
    A("s_and_b64 exec, exec, vcc")
    A(f"s_cbranch_execz {name}_end")
    A("s_waitcnt lgkmcnt(0)")
    for k in range(nslots + 1):
        A(f"v_mov_b32 v4, s{60+4*k}")
        A(f"v_mov_b32 v5, s{62+4*k}")
        A(f"global_store_dwordx2 v3, v[4:5], s[98:99] offset:{8*k}")
```

```python
from common import *

def gen_k1(name="k1_qkv_kernel"):
    A = Asm()
    kernel_head(A, name)
    V = VAlloc(1)
    A("s_cmp_ge_u32 s2, 256")
    A(f"s_cbranch_scc1 {name}_end")
    stamp(A, 0)
    A(f"s_load_dwordx4 s[4:7], s[0:1], {KA_X}")
    A(f"s_load_dwordx2 s[8:9], s[0:1], {KA_WS}")
    A("s_and_b32 s10, s2, 7")
    A("s_lshr_b32 s11, s2, 3")
    A("s_lshr_b32 s12, s10, 1")
    A("s_lshl_b32 s12, s12, 3")
    A("s_and_b32 s13, s11, 7")
    A("s_add_u32 s12, s12, s13")
    A("s_and_b32 s13, s10, 1")
    A("s_lshl_b32 s13, s13, 2")
    A("s_lshr_b32 s14, s11, 3")
    A("s_add_u32 s13, s13, s14")
    lane, t0, t1, t2 = V(), V(), V(), V()
    A(f"v_and_b32 v{lane}, 63, v0")
    A(f"v_lshrrev_b32 v{t0}, 6, v0")
    A(f"v_readfirstlane_b32 s14, v{t0}")
    A("s_and_b32 s15, s14, 1")
    A("s_lshr_b32 s16, s14, 1")
    A("s_lshl_b32 s17, s14, 13")
    vx0, vx1, vw = V(), V(), V()
    A("s_lshl_b32 s18, s12, 6")
    A("s_lshl_b32 s19, s14, 4")
    A("s_add_u32 s18, s18, s19")
    A(f"v_lshrrev_b32 v{t0}, 3, v{lane}")
    A(f"v_add_u32 v{t1}, s18, v{t0}")
    A(f"v_lshlrev_b32 v{t1}, 10, v{t1}")
    A(f"v_lshrrev_b32 v{t2}, 4, v{lane}")
    A(f"v_xor_b32 v{vx0}, v{t2}, v{lane}")
    A(f"v_and_b32 v{vx0}, 7, v{vx0}")
    A(f"v_lshl_add_u32 v{vx0}, v{vx0}, 4, v{t1}")
    A(f"v_xor_b32 v{vx1}, 64, v{vx0}")
    A(f"v_add_u32 v{vx1}, 0x2000, v{vx1}")
    A(f"v_add_u32 v{t1}, s19, v{t0}")
    A(f"v_mul_u32_u24 v{t1}, 3072, v{t1}")
    A(f"v_and_b32 v{t2}, 1, v{t2}")
    A(f"v_lshlrev_b32 v{t2}, 2, v{t2}")
    A(f"v_xor_b32 v{vw}, v{t2}, v{lane}")
    A(f"v_and_b32 v{vw}, 7, v{vw}")
    A(f"v_lshl_add_u32 v{vw}, v{vw}, 4, v{t1}")
    A("s_lshl_b32 s19, s13, 7")
    A(f"v_add_u32 v{vw}, s19, v{vw}")
    A("s_waitcnt lgkmcnt(0)")
    srd(A, 20, 4, S * D * 2)
    srd(A, 24, 6, D * 3 * D * 2)
    def dma_stage(j):
        slot = (j % 5) * 32768
        for c in range(8):
            A(f"s_add_u32 m0, s17, {slot + c*1024}")
            if c < 2:
                A(f"s_movk_i32 s30, {j*128}")
                A(f"buffer_load_dwordx4 v{(vx0, vx1)[c]}, s[20:23], s30 offen lds")
            else:
                seg, u = (c - 2) // 2, c % 2
                A(f"s_mov_b32 s30, {j*64*3072 + u*8*3072 + seg*1024}")
                A(f"buffer_load_dwordx4 v{vw}, s[24:27], s30 offen lds")
    for j in range(5): dma_stage(j)
    hh, ii, l16 = V(), V(), V()
    A(f"v_lshrrev_b32 v{hh}, 5, v{lane}")
    A(f"v_and_b32 v{ii}, 31, v{lane}")
    A(f"v_and_b32 v{l16}, 15, v{lane}")
    A("s_lshl_b32 s28, s15, 1")
    A("s_add_u32 s28, s28, s16")
    awr = [[V() for _ in range(4)] for _ in range(3)]
    A(f"v_lshrrev_b32 v{t0}, 2, v{l16}")
    A(f"v_lshl_add_u32 v{t0}, v{hh}, 3, v{t0}")
    A(f"v_lshlrev_b32 v{t0}, 7, v{t0}")
    A(f"v_lshrrev_b32 v{t1}, 4, v{ii}")
    A(f"v_lshlrev_b32 v{t1}, 5, v{t1}")
    A(f"v_and_b32 v{t2}, 3, v{lane}")
    A(f"v_lshl_add_u32 v{t1}, v{t2}, 3, v{t1}")
    A(f"v_lshrrev_b32 v{t2}, 3, v{l16}")
    A(f"v_xor_b32 v{t2}, s16, v{t2}")
    A(f"v_lshl_add_u32 v{t1}, v{t2}, 6, v{t1}")
    A(f"v_add_u32 v{t0}, v{t0}, v{t1}")
    A("s_lshl_b32 s29, s28, 13")
    A(f"v_add_u32 v{awr[0][0]}, s29, v{t0}")
    for s_ in range(1, 4):
        A(f"v_xor_b32 v{awr[0][s_]}, {hex(8192*s_)}, v{awr[0][0]}")
    axr = [[V() for _ in range(4)] for _ in range(3)]
    A("s_lshl_b32 s19, s15, 14")
    A(f"v_lshrrev_b32 v{t0}, 4, v{ii}")
    A(f"v_lshlrev_b32 v{t0}, 13, v{t0}")
    A(f"v_add_u32 v{t0}, s19, v{t0}")
    A(f"v_lshl_add_u32 v{t0}, v{l16}, 7, v{t0}")
    A(f"v_lshrrev_b32 v{t1}, 1, v{l16}")
    A(f"v_xor_b32 v{t1}, v{t1}, v{hh}")
    A("s_lshl_b32 s29, s28, 1")
    A(f"v_xor_b32 v{t1}, s29, v{t1}")
    A(f"v_lshl_add_u32 v{axr[0][0]}, v{t1}, 4, v{t0}")
    for s_ in range(1, 4):
        A(f"v_xor_b32 v{axr[0][s_]}, {32*s_}, v{axr[0][0]}")
    for w_ in (1, 2):
        for s_ in range(4):
            A(f"v_add_u32 v{axr[w_][s_]}, {hex(0x10000*w_)}, v{axr[0][s_]}")
            A(f"v_add_u32 v{awr[w_][s_]}, {hex(0x10000*w_)}, v{awr[0][s_]}")
    acc = [V(16) for _ in range(3)]
    xf = [V(4) for _ in range(2)]
    wf = [[V(4) for _ in range(3)] for _ in range(2)]
    st = [V() for _ in range(4)]
    cs = [V() for _ in range(3)]
    for x_ in st + cs: A(f"v_mov_b32 v{x_}, 0")
    A("s_mov_b32 s31, 0x3f803f80")
    def rd_x(k):
        j, s_ = k // 4, k % 4
        base = (j % 5) * 32768
        A(f"ds_read_b128 {v(xf[k%2],4)}, v{axr[base>>16][s_]} offset:{base & 0xffff}")
    def rd_w(k, seg):
        j, s_ = k // 4, k % 4
        base = (j % 5) * 32768 + (1 + seg) * 2048
        for a_ in range(2):
            A(f"ds_read_b64_tr_b16 {v(wf[k%2][seg]+2*a_,2)}, v{awr[base>>16][s_]} offset:{(base & 0xffff) + 512*a_}")
    vm = {0: 32, 1: 24, 2: 24, 3: 24, 4: 24, 5: 16, 6: 8, 7: 0}
    A(f"s_waitcnt vmcnt({vm[0]})")
    A("s_barrier")
    stamp(A, 1)
    rd_x(0); [rd_w(0, g) for g in range(3)]
    for k in range(32):
        j, s_ = k // 4, k % 4
        b = k % 2
        last = k == 31
        c_ = (lambda g: "0" if k == 0 else v(acc[g], 16))
        if s_ == 3 and not last:
            A(f"s_waitcnt vmcnt({vm[j+1]}) lgkmcnt(0)")
            A("s_barrier")
        else:
            A("s_waitcnt lgkmcnt(4)")
        A(f"v_mfma_f32_32x32x16_bf16 {v(acc[0],16)}, {v(wf[b][0],4)}, {v(xf[b],4)}, {c_(0)}")
        if not last: rd_x(k + 1); rd_w(k + 1, 0)
        A(f"s_waitcnt lgkmcnt({2 if last else 5})")
        A(f"v_mfma_f32_32x32x16_bf16 {v(acc[1],16)}, {v(wf[b][1],4)}, {v(xf[b],4)}, {c_(1)}")
        if not last: rd_w(k + 1, 1)
        A(f"s_waitcnt lgkmcnt({0 if last else 5})")
        A(f"v_mfma_f32_32x32x16_bf16 {v(acc[2],16)}, {v(xf[b],4)}, {v(wf[b][2],4)}, {c_(2)}")
        if not last: rd_w(k + 1, 2)
        if s_ == 3 and j + 5 < 8 + 0 and j + 5 <= 7:
            dma_stage(j + 5)
        if s_ in (0, 3):
            for q in range(4):
                A(f"v_dot2_f32_bf16 v{st[2*(q&1)]}, v{xf[b]+q}, s31, v{st[2*(q&1)]}")
                A(f"v_dot2_f32_bf16 v{st[2*(q&1)+1]}, v{xf[b]+q}, v{xf[b]+q}, v{st[2*(q&1)+1]}")
        else:
            for q in range(4):
                for g in range(3):
                    A(f"v_dot2_f32_bf16 v{cs[g]}, v{wf[b][g]+q}, s31, v{cs[g]}")
    stamp(A, 2)
    A("s_barrier")
    A(f"v_add_f32 v{st[0]}, v{st[0]}, v{st[2]}")
    A(f"v_add_f32 v{st[1]}, v{st[1]}, v{st[3]}")
    assert st[1] == st[0] + 1
    A("s_lshl_b32 s18, s15, 10")
    A("s_lshl_b32 s19, s16, 4")
    A("s_add_u32 s19, s18, s19")
    a0, a1, a2, a3 = V(), V(), V(), V()
    A(f"v_lshlrev_b32 v{a0}, 5, v{ii}")
    A(f"v_add_u32 v{a2}, s18, v{a0}")
    A(f"v_lshl_add_u32 v{a0}, v{hh}, 3, v{a0}")
    A(f"v_add_u32 v{a0}, s19, v{a0}")
    stp = V(2)
    A(f"v_mov_b32 v{stp}, v{st[0]}")
    A(f"v_mov_b32 v{stp+1}, v{st[1]}")
    A(f"ds_write_b64 v{a0}, {v(stp,2)}")
    A("s_lshl_b32 s18, s16, 9")
    A("s_lshl_b32 s19, s15, 3")
    A("s_add_u32 s19, s18, s19")
    A(f"v_lshlrev_b32 v{a1}, 4, v{ii}")
    A(f"v_add_u32 v{a3}, s18, v{a1}")
    A(f"v_lshl_add_u32 v{a1}, v{hh}, 2, v{a1}")
    A(f"v_add_u32 v{a1}, s19, v{a1}")
    for g in range(3):
        A(f"ds_write_b32 v{a1}, v{cs[g]} offset:{2048 + g*1024}")
    A("s_waitcnt lgkmcnt(0)")
    A("s_barrier")
    tmp = V(20, 4)
    A(f"ds_read_b128 {v(tmp,4)}, v{a2}")
    A(f"ds_read_b128 {v(tmp+4,4)}, v{a2} offset:16")
    for g in range(3):
        A(f"ds_read_b128 {v(tmp+8+4*g,4)}, v{a3} offset:{2048 + g*1024}")
    A("s_waitcnt lgkmcnt(3)")
    mu2, rs2, rq2, csv2 = V(2), V(2), V(2), V(2)
    A(f"v_add_f32 v{t0}, v{tmp}, v{tmp+2}")
    A(f"v_add_f32 v{t1}, v{tmp+1}, v{tmp+3}")
    A(f"v_add_f32 v{t2}, v{tmp+4}, v{tmp+6}")
    A(f"v_add_f32 v{t0}, v{t0}, v{t2}")
    A(f"v_add_f32 v{t2}, v{tmp+5}, v{tmp+7}")
    A(f"v_add_f32 v{t1}, v{t1}, v{t2}")
    A(f"v_mul_f32 v{mu2}, {f32(-1.0/D)}, v{t0}")
    A(f"v_mul_f32 v{t1}, {f32(1.0/D)}, v{t1}")
    A(f"v_fma_f32 v{t1}, -v{mu2}, v{mu2}, v{t1}")
    A(f"v_max_f32 v{t1}, 0, v{t1}")
    A(f"v_add_f32 v{t1}, {f32(1e-5)}, v{t1}")
    A(f"v_rsq_f32 v{rs2}, v{t1}")
    A(f"v_mov_b32 v{mu2+1}, v{mu2}")
    A(f"v_mov_b32 v{rs2+1}, v{rs2}")
    A(f"v_mul_f32 v{rq2}, {f32(0.25*LOG2E)}, v{rs2}")
    A(f"v_mov_b32 v{rq2+1}, v{rq2}")
    A(f"v_mul_f32 v{t2}, v{mu2}, v{rs2}")
    A("s_waitcnt lgkmcnt(0)")
    for g in range(3):
        b_ = tmp + 8 + 4 * g
        A(f"v_add_f32 v{b_}, v{b_}, v{b_+1}")
        A(f"v_add_f32 v{b_+2}, v{b_+2}, v{b_+3}")
        A(f"v_add_f32 v{cs[g]}, v{b_}, v{b_+2}")
    A(f"v_mov_b32 v{csv2}, v{cs[2]}")
    A(f"v_mov_b32 v{csv2+1}, v{cs[2]}")
    A("s_lshl_b32 s18, s14, 10")
    A(f"v_lshl_add_u32 v{a0}, v{ii}, 2, s18")
    A(f"ds_write_b32 v{a0}, v{cs[0]} offset:8192")
    A(f"ds_write_b32 v{a0}, v{cs[1]} offset:{8192+128}")
    A(f"ds_write_b32 v{a0}, v{rs2} offset:{8192+256}")
    A(f"ds_write_b32 v{a0}, v{t2} offset:{8192+384}")
    A(f"v_lshl_add_u32 v{a1}, v{hh}, 4, s18")
    pr = [V(16) for _ in range(4)]
    A("s_waitcnt lgkmcnt(0)")
    for q in range(4):
        for a_ in range(4):
            A(f"ds_read_b128 {v(pr[q]+4*a_,4)}, v{a1} offset:{8192 + q*128 + a_*32}")
    srd(A, 20, 8, WS_SIZE)
    A(f"v_mov_b32 v{stp}, -1")
    A(f"v_mov_b32 v{stp+1}, -1")
    A(f"v_lshlrev_b32 v{a0}, 3, v0")
    A("s_lshl_b32 s18, s2, 11")
    A(f"s_add_u32 s18, s18, {hex(WS_SY)}")
    A(f"buffer_store_dwordx2 {v(stp,2)}, v{a0}, s[20:23], s18 offen")
    A("s_lshl_b32 s18, s12, 1")
    A("s_add_u32 s18, s18, s15")
    A("s_lshl_b32 s19, s13, 2")
    A("s_lshl_b32 s28, s16, 1")
    A("s_add_u32 s19, s19, s28")
    A("s_lshl_b32 s28, s19, 6")
    A("s_add_u32 s28, s28, s18")
    A("s_lshl_b32 s28, s28, 10")
    A(f"v_lshlrev_b32 v{a0}, 4, v{lane}")
    A(f"v_add_u32 v{a0}, s28, v{a0}")
    A(f"v_lshrrev_b32 v{a2}, 4, v{ii}")
    A(f"v_lshlrev_b32 v{a2}, 16, v{a2}")
    A(f"v_lshl_add_u32 v{a2}, v{hh}, 8, v{a2}")
    A(f"v_lshl_add_u32 v{a2}, v{l16}, 4, v{a2}")
    A(f"v_add_u32 v{a2}, s28, v{a2}")
    pk = [V(8) for _ in range(3)]
    for g in range(2):
        A(f"s_waitcnt lgkmcnt({12 - 4*g})")
        sc = rq2 if g == 0 else rs2
        for p_ in range(8):
            c_ = acc[g] + 2 * p_
            A(f"v_pk_fma_f32 {v(c_,2)}, {v(pr[g]+2*p_,2)}, {v(mu2,2)}, {v(c_,2)}")
        for p_ in range(8):
            c_ = acc[g] + 2 * p_
            A(f"v_pk_mul_f32 {v(c_,2)}, {v(c_,2)}, {v(sc,2)}")
        for p_ in range(8):
            c_ = acc[g] + 2 * p_
            A(f"v_cvt_pk_bf16_f32 v{pk[g]+p_}, v{c_}, v{c_+1}")
        A(f"s_mov_b32 s30, {hex((WS_QF, WS_KF)[g])}")
        A(f"s_add_u32 s29, s30, 0x10000")
        A(f"buffer_store_dwordx4 {v(pk[g],4)}, v{a0}, s[20:23], s30 offen")
        A(f"buffer_store_dwordx4 {v(pk[g]+4,4)}, v{a0}, s[20:23], s29 offen")
    A("s_waitcnt lgkmcnt(0)")
    for p_ in range(8):
        c_ = acc[2] + 2 * p_
        A(f"v_pk_mul_f32 {v(c_,2)}, {v(c_,2)}, {v(pr[2]+2*p_,2)}")
    for p_ in range(8):
        c_ = acc[2] + 2 * p_
        A(f"v_pk_fma_f32 {v(c_,2)}, {v(pr[3]+2*p_,2)}, {v(csv2,2)}, {v(c_,2)}")
    for p_ in range(8):
        c_ = acc[2] + 2 * p_
        A(f"v_cvt_pk_bf16_f32 v{pk[2]+p_}, v{c_}, v{c_+1}")
    A(f"s_mov_b32 s30, {hex(WS_VF)}")
    A(f"buffer_store_dwordx4 {v(pk[2],4)}, v{a2}, s[20:23], s30 offen")
    A(f"buffer_store_dwordx4 {v(pk[2]+4,4)}, v{a2}, s[20:23], s30 offen offset:512")
    A(f"v_mov_b32 v{t0}, 0")
    A(f"v_mov_b32 v{t1}, 0")
    for q in range(4):
        A(f"v_dot2_f32_bf16 v{t0}, v{pk[1]+q}, v{pk[1]+q}, v{t0}")
        A(f"v_dot2_f32_bf16 v{t1}, v{pk[1]+4+q}, v{pk[1]+4+q}, v{t1}")
    A(f"v_permlane32_swap_b32 v{t0}, v{t1}")
    A(f"v_add_f32 v{t0}, v{t0}, v{t1}")
    for sh in (8, 4, 2, 1):
        A(f"v_max_f32_dpp v{t0}, v{t0}, v{t0} row_ror:{sh} row_mask:0xf bank_mask:0xf")
    A("s_lshl_b32 s28, s19, 9")
    A("s_lshl_b32 s29, s18, 3")
    A("s_add_u32 s28, s28, s29")
    A(f"v_lshrrev_b32 v{a1}, 4, v{ii}")
    A(f"v_lshlrev_b32 v{a1}, 2, v{a1}")
    A(f"v_lshl_add_u32 v{a1}, v{hh}, 9, v{a1}")
    A(f"v_add_u32 v{a1}, s28, v{a1}")
    A(f"s_mov_b32 s30, {hex(WS_KN)}")
    A("s_mov_b32 exec_lo, 0x00010001")
    A("s_mov_b32 exec_hi, 0x00010001")
    A(f"buffer_store_dword v{t0}, v{a1}, s[20:23], s30 offen")
    stamp_flush(A, name, 0, 3)
    A.label(f"{name}_end")
    A("s_endpgm")
    return A.finish() + kernel_desc(name, V.hi), (name, 256, 256, 163840)
```

```python
from common import *

THRESH = 40.0

def gen_k2(name="k2_attn_kernel"):
    A = Asm()
    kernel_head(A, name)
    V = VAlloc(1)
    A("s_cmp_ge_u32 s2, 256")
    A(f"s_cbranch_scc1 {name}_end")
    stamp(A, 0)
    A(f"s_load_dwordx2 s[8:9], s[0:1], {KA_WS}")
    A("s_and_b32 s10, s2, 7")
    A("s_lshl_b32 s10, s10, 2")
    A("s_bfe_u32 s11, s2, 0x20003")
    A("s_add_u32 s10, s10, s11")
    A("s_lshr_b32 s11, s2, 5")
    lane, t0, t1, t2 = V(), V(), V(), V()
    A(f"v_and_b32 v{lane}, 63, v0")
    A(f"v_lshrrev_b32 v{t0}, 6, v0")
    A(f"v_readfirstlane_b32 s14, v{t0}")
    A("s_and_b32 s15, s14, 1")
    A("s_lshr_b32 s16, s14, 1")
    vk, vv_ = V(), V()
    A(f"v_lshlrev_b32 v{vk}, 4, v{lane}")
    A(f"v_lshrrev_b32 v{t0}, 5, v{lane}")
    A(f"v_and_b32 v{t1}, 15, v{lane}")
    A(f"v_lshlrev_b32 v{t1}, 4, v{t1}")
    A(f"v_lshl_add_u32 v{vv_}, v{t0}, 8, v{t1}")
    A(f"v_add_u32 v{vv_}, {hex(WS_VF - WS_KF)}, v{vv_}")
    Q = [V(4) for _ in range(4)]
    KF = [V(4) for _ in range(4)]
    V0 = [V(4) for _ in range(4)]
    V1 = [V(4) for _ in range(4)]
    P0, P1 = V(4), V(4)
    SB = [V(16) for _ in range(2)]
    O = [V(16) for _ in range(4)]
    NM = [V(16) for _ in range(4)]
    kn = V(2)
    mm = [V() for _ in range(4)]
    A(f"v_and_b32 v{t0}, 27, v{lane}")
    A(f"v_cmp_eq_u32 vcc, 16, v{t0}")
    A(f"v_mov_b32 v{t1}, 0x3f803f80")
    A(f"v_cndmask_b32 v{t0}, 0, v{t1}, vcc")
    for s_ in range(4):
        for q in range(4):
            A(f"v_mov_b32 v{V0[s_]+q}, v{t0}")
            A(f"v_mov_b32 v{V1[s_]+q}, v{t0}")
    A("s_lshl_b32 s17, s11, 3")
    A("s_lshl_b32 s19, s15, 2")
    A("s_add_u32 s17, s17, s19")
    A("s_lshl_b32 s18, s10, 16")
    A("s_lshl_b32 s19, s17, 10")
    A("s_add_u32 s19, s19, s18")
    A("s_lshl_b32 s28, s16, 11")
    A(f"v_xor_b32 v{t2}, s28, v{vk}")
    A(f"v_xor_b32 v{t1}, 0x800, v{t2}")
    A("s_lshl_b32 s29, s16, 15")
    A("s_add_u32 s29, s29, s18")
    A(f"s_add_u32 s29, s29, {hex(WS_KF)}")
    A("s_lshl_b32 s30, s10, 9")
    A(f"s_add_u32 s30, s30, {hex(WS_KN)}")
    A(f"v_lshlrev_b32 v{t0}, 3, v{lane}")
    A("s_mov_b32 s32, 0x0000ffff")
    A("s_mov_b32 s33, 0x0000ffff")
    A("s_waitcnt lgkmcnt(0)")
    srd(A, 20, 8, WS_SIZE)
    assert WS_QF == 0
    A(f"buffer_load_dwordx4 {v(Q[0],4)}, v{t2}, s[20:23], s19 offen")
    A(f"buffer_load_dwordx4 {v(Q[1],4)}, v{t2}, s[20:23], s19 offen offset:1024")
    A(f"buffer_load_dwordx4 {v(Q[2],4)}, v{t1}, s[20:23], s19 offen")
    A(f"buffer_load_dwordx4 {v(Q[3],4)}, v{t1}, s[20:23], s19 offen offset:1024")
    A(f"buffer_load_dwordx2 {v(kn,2)}, v{t0}, s[20:23], s30 offen")
    def load_kv(slot, soff="s29"):
        A(f"buffer_load_dwordx4 {v(KF[slot],4)}, v{vk}, s[20:23], {soff} offen offset:{slot*1024}")
        A("s_mov_b64 exec, s[32:33]")
        A(f"buffer_load_dwordx4 {v(V0[slot],4)}, v{vv_}, s[20:23], {soff} offen offset:{slot*1024}")
        A(f"buffer_load_dwordx4 {v(V1[slot],4)}, v{vv_}, s[20:23], {soff} offen offset:{slot*1024+512}")
        A("s_mov_b64 exec, -1")
    for s_ in range(3): load_kv(s_)
    for t in range(4):
        for q in range(16): A(f"v_mov_b32 v{O[t]+q}, 0")
    for q in range(4): A(f"v_mov_b32 v{P1+q}, 0")
    for t in range(4): A(f"v_mov_b32 v{mm[t]}, 0")
    A("s_waitcnt vmcnt(9)")
    A(f"v_max_f32 v{kn}, v{kn}, v{kn+1}")
    for sh in (8, 4, 2, 1):
        A(f"v_max_f32_dpp v{kn}, v{kn}, v{kn} row_ror:{sh} row_mask:0xf bank_mask:0xf")
    for q in range(4):
        for t in range(4):
            A(f"v_dot2_f32_bf16 v{mm[t]}, v{Q[t]+q}, v{Q[t]+q}, v{mm[t]}")
    A(f"v_readlane_b32 s34, v{kn}, 0")
    A(f"v_readlane_b32 s35, v{kn}, 16")
    A(f"v_readlane_b32 s36, v{kn}, 32")
    A(f"v_readlane_b32 s37, v{kn}, 48")
    A("s_max_u32 s34, s34, s35")
    A("s_max_u32 s36, s36, s37")
    A("s_max_u32 s34, s34, s36")
    for t in range(4):
        A(f"v_mov_b32 v{t0}, v{mm[t]}")
        A(f"v_permlane32_swap_b32 v{mm[t]}, v{t0}")
        A(f"v_add_f32 v{mm[t]}, v{mm[t]}, v{t0}")
        A(f"v_mul_f32 v{mm[t]}, s34, v{mm[t]}")
        A(f"v_sqrt_f32 v{mm[t]}, v{mm[t]}")
    A(f"v_max3_f32 v{t0}, v{mm[0]}, v{mm[1]}, v{mm[2]}")
    A(f"v_max_f32 v{t0}, v{t0}, v{mm[3]}")
    A(f"v_add_f32 v{t1}, v{mm[0]}, v{mm[1]}")
    A(f"v_add_f32 v{t2}, v{mm[2]}, v{mm[3]}")
    A(f"v_add_f32 v{t1}, v{t1}, v{t2}")
    A(f"v_mov_b32 v{t2}, {f32(THRESH)}")
    A(f"v_cmp_nle_f32 vcc, v{t0}, v{t2}")
    A(f"v_cmp_u_f32 s[36:37], v{t1}, v{t1}")
    A("s_or_b64 vcc, vcc, s[36:37]")
    A(f"s_cbranch_vccz {name}_fast")
    A(f"s_add_u32 s36, s18, {hex(WS_KF)}")
    A("s_mov_b32 s37, 64")
    for t in range(4): A(f"v_mov_b32 v{mm[t]}, 0xff800000")
    A.label(f"{name}_mloop")
    A(f"buffer_load_dwordx4 {v(KF[3],4)}, v{vk}, s[20:23], s36 offen")
    A("s_waitcnt vmcnt(0)")
    for t in range(4):
        A(f"v_mfma_f32_32x32x16_bf16 {v(SB[0],16)}, {v(KF[3],4)}, {v(Q[t],4)}, 0")
        for q in range(8):
            A(f"v_max3_f32 v{mm[t]}, v{SB[0]+2*q}, v{SB[0]+2*q+1}, v{mm[t]}")
    A("s_add_u32 s36, s36, 1024")
    A("s_sub_u32 s37, s37, 1")
    A("s_cmp_lg_u32 s37, 0")
    A(f"s_cbranch_scc1 {name}_mloop")
    for t in range(4):
        A(f"v_mov_b32 v{t0}, v{mm[t]}")
        A(f"v_permlane32_swap_b32 v{mm[t]}, v{t0}")
        A(f"v_max_f32 v{mm[t]}, v{mm[t]}, v{t0}")
    A.label(f"{name}_fast")
    for t in range(4):
        for q in range(16): A(f"v_sub_f32 v{NM[t]+q}, 0, v{mm[t]}")
    A("s_waitcnt vmcnt(6)")
    A(f"v_mfma_f32_32x32x16_bf16 {v(SB[0],16)}, {v(KF[0],4)}, {v(Q[0],4)}, {v(NM[0],16)}")
    A("s_add_u32 s31, s29, 4096")
    A("s_mov_b32 s38, 8")
    stamp(A, 1)
    A("s_nop 8")
    A.raw(".p2align 6")
    A.label(f"{name}_loop")
    for kt in range(4):
        for t in range(4):
            u = kt * 4 + t
            S_, Sn = SB[u % 2], SB[(u + 1) % 2]
            nkt, nt = (kt + (t + 1) // 4) % 4, (t + 1) % 4
            pkt, pt = (kt - (1 if t == 0 else 0)) % 4, (t - 1) % 4
            e = lambda i: A(f"v_exp_f32 v{S_+i}, v{S_+i}")
            c = lambda i: A(f"v_cvt_pk_bf16_f32 v{(P0 if i < 8 else P1) + (i % 8)//2}, v{S_+i}, v{S_+i+1}")
            if t == 3: A("s_waitcnt vmcnt(6)")
            A(f"v_mfma_f32_32x32x16_bf16 {v(Sn,16)}, {v(KF[nkt],4)}, {v(Q[nt],4)}, {v(NM[nt],16)}")
            e(0); e(1); e(2)
            A(f"v_mfma_f32_32x32x16_bf16 {v(O[pt],16)}, {v(V1[pkt],4)}, {v(P1,4)}, {v(O[pt],16)}")
            c(0); e(3); e(4); c(2); e(5); e(6); c(4)
            if t == 1:
                load_kv((kt - 1) % 4, "s29" if kt == 0 else "s31")
            e(7); e(8); c(6); e(9); e(10)
            A(f"v_mfma_f32_32x32x16_bf16 {v(O[t],16)}, {v(V0[kt],4)}, {v(P0,4)}, {v(O[t],16)}")
            c(8); e(11); e(12); c(10); e(13); e(14); e(15)
            if kt == 3 and t == 3:
                A("s_mov_b32 s29, s31")
                A("s_add_u32 s31, s31, 4096")
                A("s_sub_u32 s38, s38, 1")
                A("s_cmp_lg_u32 s38, 0")
            c(12); c(14)
    A(f"s_cbranch_scc1 {name}_loop")
    A(f"v_mfma_f32_32x32x16_bf16 {v(O[3],16)}, {v(V1[3],4)}, {v(P1,4)}, {v(O[3],16)}")
    stamp(A, 2)
    aw, ar, aw4, ar4 = V(), V(), V(), V()
    A("s_lshl_b32 s34, s14, 13")
    A("s_xor_b32 s35, s34, 0x4000")
    A(f"v_add_u32 v{aw}, s34, v{vk}")
    A(f"v_add_u32 v{ar}, s35, v{vk}")
    A(f"v_lshl_add_u32 v{aw4}, v{lane}, 2, s34")
    A(f"v_lshl_add_u32 v{ar4}, v{lane}, 2, s35")
    for t in (2, 3):
        A(f"ds_write_b128 v{aw}, {v(O[t],4)} offset:{(t-2)*4096}")
        A(f"ds_write_b128 v{aw}, {v(O[t]+4,4)} offset:{(t-2)*4096+1024}")
        A(f"ds_write_b32 v{aw4}, v{O[t]+8} offset:{(t-2)*4096+2048}")
    A("s_waitcnt lgkmcnt(0)")
    A("s_barrier")
    for t in (0, 1):
        A(f"ds_read_b128 {v(SB[t],4)}, v{ar} offset:{t*4096}")
        A(f"ds_read_b128 {v(SB[t]+4,4)}, v{ar} offset:{t*4096+1024}")
        A(f"ds_read_b32 v{SB[t]+8}, v{ar4} offset:{t*4096+2048}")
    A("s_lshl_b32 s34, s16, 1")
    A("s_add_u32 s34, s34, s17")
    A("s_lshl_b32 s34, s34, 5")
    A("s_add_u32 s34, s34, s10")
    A("s_lshl_b32 s34, s34, 10")
    A(f"s_add_u32 s34, s34, {hex(WS_OF)}")
    A("s_add_u32 s35, s34, 0x8000")
    for t in (0, 1):
        A(f"s_waitcnt lgkmcnt({3 - 3*t})")
        A(f"v_add_f32 v{t0}, v{O[t]+8}, v{SB[t]+8}")
        A(f"v_rcp_f32 v{t0}, v{t0}")
        for q in range(8): A(f"v_add_f32 v{O[t]+q}, v{O[t]+q}, v{SB[t]+q}")
        for q in range(8): A(f"v_mul_f32 v{O[t]+q}, v{O[t]+q}, v{t0}")
        pk = P0 if t == 0 else P1
        for q in range(4): A(f"v_cvt_pk_bf16_f32 v{pk+q}, v{O[t]+2*q}, v{O[t]+2*q+1}")
        A(f"buffer_store_dwordx4 {v(pk,4)}, v{vk}, s[20:23], s{34+t} offen")
    stamp_flush(A, name, 1, 3)
    A.label(f"{name}_end")
    A("s_endpgm")
    return A.finish() + kernel_desc(name, V.hi), (name, 256, 256, 32768)
```

```python
from common import *
import math
GA = 2 * math.sqrt(2 / math.pi) * LOG2E
GB = GA * 0.044715

LANE, T0, T1, T2, T3, T4, T5, VL16 = 1, 2, 3, 4, 5, 6, 7, 8
HH, II, L16, GG = 9, 10, 11, 34
HP, Z1P = 12, 20
AD = 36
W0 = 56
RB, CB, WV, TH, KH = 10, 11, 14, 15, 16

def poll(A, name, tag, loads, regs, cond_regs):
    A(f"s_mov_b32 s40, {SPIN_MAX}")
    A.label(f"{name}_poll{tag}")
    for l in loads: A(l)
    A("s_waitcnt vmcnt(0)")
    acc = cond_regs[0]
    if len(cond_regs) > 1:
        A(f"v_max_u32 v{T0}, v{cond_regs[0]}, v{cond_regs[1]}")
        for c in cond_regs[2:]: A(f"v_max_u32 v{T0}, v{T0}, v{c}")
        acc = T0
    A(f"v_cmp_eq_u32 vcc, -1, v{acc}")
    A("s_sub_u32 s40, s40, 1")
    A(f"s_cbranch_scc1 {name}_done{tag}")
    A(f"s_cbranch_vccnz {name}_poll{tag}")
    A.label(f"{name}_done{tag}")

def dma128(A, vo, nrow_instr, row_bytes, lds_base_sreg, srdreg, soff0=0):
    for i in range(nrow_instr):
        A(f"s_add_u32 m0, s{lds_base_sreg}, {i*1024}")
        A(f"s_mov_b32 s30, {soff0 + i*8*row_bytes}")
        A(f"buffer_load_dwordx4 v{vo}, s[{srdreg}:{srdreg+3}], s30 offen lds")

def red_g(A, regs):
    for x in regs:
        A(f"v_mov_b32 v{T0}, v{x}")
        A(f"v_permlane32_swap_b32 v{x}, v{T0}")
        A(f"v_add_f32 v{x}, v{x}, v{T0}")
        A(f"v_mov_b32 v{T0}, v{x}")
        A(f"v_permlane16_swap_b32 v{x}, v{T0}")
        A(f"v_add_f32 v{x}, v{x}, v{T0}")

def ln_from_sums(A, sm, sq, n, nmu, rs):
    A(f"v_mul_f32 v{nmu}, {f32(-1.0/n)}, v{sm}")
    A(f"v_mul_f32 v{sq}, {f32(1.0/n)}, v{sq}")
    A(f"v_fma_f32 v{sq}, -v{nmu}, v{nmu}, v{sq}")
    A(f"v_max_f32 v{sq}, 0, v{sq}")
    A(f"v_add_f32 v{sq}, {f32(1e-5)}, v{sq}")
    A(f"v_rsq_f32 v{rs}, v{sq}")

def gen_k3(name="k3_tail_kernel"):
    A = Asm()
    kernel_head(A, name)
    A("s_cmp_ge_u32 s2, 256")
    A(f"s_cbranch_scc1 {name}_end")
    stamp(A, 0)
    A(f"s_load_dwordx2 s[4:5], s[0:1], {KA_X}")
    A(f"s_load_dwordx2 s[6:7], s[0:1], {KA_WO}")
    A(f"s_load_dwordx2 s[8:9], s[0:1], {KA_WS}")
    A(f"s_load_dwordx8 s[44:51], s[0:1], {KA_WIN}")
    A(f"s_load_dwordx2 s[52:53], s[0:1], {KA_OUT}")
    A("s_and_b32 s12, s2, 7")
    A("s_lshr_b32 s13, s2, 3")
    A(f"s_lshr_b32 s{RB}, s12, 1")
    A(f"s_lshl_b32 s{RB}, s{RB}, 3")
    A("s_and_b32 s17, s13, 7")
    A(f"s_add_u32 s{RB}, s{RB}, s17")
    A(f"s_and_b32 s{CB}, s12, 1")
    A(f"s_lshl_b32 s{CB}, s{CB}, 2")
    A("s_lshr_b32 s17, s13, 3")
    A(f"s_add_u32 s{CB}, s{CB}, s17")
    A(f"v_and_b32 v{LANE}, 63, v0")
    A(f"v_lshrrev_b32 v{T0}, 6, v0")
    A(f"v_readfirstlane_b32 s{WV}, v{T0}")
    A(f"s_lshr_b32 s{TH}, s{WV}, 1")
    A(f"s_and_b32 s{KH}, s{WV}, 1")
    A(f"v_lshlrev_b32 v{VL16}, 4, v{LANE}")
    A(f"v_lshrrev_b32 v{HH}, 5, v{LANE}")
    A(f"v_and_b32 v{II}, 31, v{LANE}")
    A(f"v_and_b32 v{L16}, 15, v{LANE}")
    A(f"v_lshrrev_b32 v{GG}, 4, v{LANE}")
    VDW = AD
    A(f"v_lshrrev_b32 v{T0}, 3, v{LANE}")
    A(f"v_lshlrev_b32 v{T0}, 10, v{T0}")
    A(f"v_and_b32 v{T1}, 1, v{GG}")
    A(f"v_lshlrev_b32 v{T1}, 2, v{T1}")
    A(f"v_xor_b32 v{T1}, v{T1}, v{LANE}")
    A(f"v_and_b32 v{T1}, 7, v{T1}")
    A(f"v_lshl_add_u32 v{T0}, v{T1}, 4, v{T0}")
    A(f"s_lshl_b32 s17, s{CB}, 7")
    A(f"v_add_u32 v{VDW}, s17, v{T0}")
    VDO = AD + 1
    A(f"s_lshl_b32 s17, s{WV}, 17")
    A(f"v_add_u32 v{VDO}, s17, v{VDW}")
    A(f"s_lshl_b32 s18, s{WV}, 14")
    A("s_waitcnt lgkmcnt(0)")
    srd(A, 20, 8, WS_SIZE)
    srd(A, 24, 6, D * D * 2)
    dma128(A, VDO, 16, 1024, 18, 24)
    OFR = W0
    A(f"s_lshl_b32 s17, s{RB}, 1")
    A(f"s_add_u32 s17, s17, s{TH}")
    A("s_mov_b32 s19, s17")
    A("s_lshl_b32 s17, s17, 15")
    A(f"s_lshl_b32 s28, s{KH}, 14")
    A("s_add_u32 s17, s17, s28")
    A(f"s_add_u32 s17, s17, {hex(WS_OF)}")
    for ks in range(16):
        if ks % 4 == 0 and ks: A("s_add_u32 s17, s17, 4096")
        A(f"buffer_load_dwordx4 {v(OFR+4*ks,4)}, v{VL16}, s[20:23], s17 offen offset:{(ks%4)*1024} sc1")
    XR = W0 + 112
    VXO = AD + 2
    A("s_lshl_b32 s17, s19, 15")
    A(f"s_lshl_b32 s28, s{CB}, 7")
    A("s_add_u32 s17, s17, s28")
    A(f"s_lshl_b32 s28, s{KH}, 6")
    A("s_add_u32 s17, s17, s28")
    A(f"v_lshlrev_b32 v{T0}, 10, v{II}")
    A(f"v_add_u32 v{VXO}, s17, v{T0}")
    A(f"v_lshl_add_u32 v{T0}, v{HH}, 3, v{VXO}")
    srd(A, 24, 4, S * D * 2)
    for q in range(4):
        A(f"buffer_load_dwordx2 {v(XR+2*q,2)}, v{T0}, s[24:27], 0 offen offset:{q*16}")
    VT0, VT1 = AD + 3, AD + 4
    A(f"v_lshrrev_b32 v{T0}, 2, v{L16}")
    A(f"v_lshl_add_u32 v{T0}, v{HH}, 2, v{T0}")
    A(f"v_lshlrev_b32 v{T0}, 7, v{T0}")
    A(f"v_and_b32 v{T1}, 1, v{GG}")
    A(f"v_lshl_add_u32 v{T0}, v{T1}, 5, v{T0}")
    A(f"v_and_b32 v{T1}, 3, v{LANE}")
    A(f"v_lshl_add_u32 v{T0}, v{T1}, 3, v{T0}")
    A(f"v_lshrrev_b32 v{T1}, 3, v{L16}")
    A(f"v_xor_b32 v{T1}, s{KH}, v{T1}")
    A(f"v_lshl_add_u32 v{VT0}, v{T1}, 6, v{T0}")
    A(f"s_lshl_b32 s17, s{KH}, 15")
    A(f"v_add_u32 v{T2}, s17, v{VT0}")
    A(f"v_xor_b32 v{T3}, 64, v{T2}")
    A("s_waitcnt vmcnt(20)")
    A("s_barrier")
    for ks in range(16):
        for p in range(2):
            for a_ in range(2):
                A(f"ds_read_b64_tr_b16 {a(8*ks+4*p+2*a_,2)}, v{(T2,T3)[p]} offset:{ks*2048+a_*1024}")
    VWI = AD + 5
    for m in range(7):
        A(f"v_add_u32 v{T0}, {64*m}, v{LANE}")
        A(f"v_mul_u32_u24 v{T1}, 4682, v{T0}")
        A(f"v_lshrrev_b32 v{T1}, 16, v{T1}")
        A(f"v_mul_u32_u24 v{T4}, 14, v{T1}")
        A(f"v_sub_u32 v{T0}, v{T0}, v{T4}")
        A(f"v_mul_u32_u24 v{T1}, 3584, v{T1}")
        A(f"v_lshl_add_u32 v{VWI+m}, v{T0}, 4, v{T1}")
    srd(A, 56, 44, D * 2 * FH * 2)
    A(f"s_mul_i32 s41, s{WV}, {128*3584}")
    A(f"s_mul_i32 s17, s{CB}, 224")
    A("s_add_u32 s41, s41, s17")
    A(f"s_mul_i32 s42, s{WV}, {28*1024}")
    def dma_win(half):
        for grp in range(4):
            A(f"s_add_u32 s30, s41, {grp*32*3584 + half*1792}")
            for m in range(7):
                A(f"s_add_u32 m0, s42, {(grp*7+m)*1024}")
                A(f"buffer_load_dwordx4 v{VWI+m}, s[56:59], s30 offen lds")
    A("s_waitcnt lgkmcnt(0)")
    A("s_barrier")
    stamp(A, 1)
    ACC = W0 + 64
    A("s_waitcnt vmcnt(4)")
    dma_win(1)
    for ks in range(16):
        for p in range(2):
            c_ = "0" if ks == 0 else v(ACC+16*p,16)
            A(f"v_mfma_f32_32x32x16_bf16 {v(ACC+16*p,16)}, {a(8*ks+4*p,4)}, {v(OFR+4*ks,4)}, {c_}")
    XB = 112 * 1024
    VXW, VXR = AD + 12, AD + 13
    A(f"s_mul_i32 s17, s{WV}, 7168")
    A(f"s_add_u32 s17, s17, {XB}")
    A(f"v_add_u32 v{VXW}, s17, v{VL16}")
    A(f"s_xor_b32 s17, s{WV}, 1")
    A("s_mul_i32 s17, s17, 7168")
    A(f"s_add_u32 s17, s17, {XB}")
    A(f"v_add_u32 v{VXR}, s17, v{VL16}")
    def exchange(src, dst, n4):
        for q in range(n4): A(f"ds_write_b128 v{VXW}, {v(src+4*q,4)} offset:{q*1024}")
        A("s_waitcnt lgkmcnt(0)")
        A("s_barrier")
        for q in range(n4): A(f"ds_read_b128 {v(dst+4*q,4)}, v{VXR} offset:{q*1024}")
    RCV = W0 + 96
    exchange(ACC + 16, RCV, 4)
    A("s_waitcnt vmcnt(28)")
    for q in range(8):
        A(f"v_lshlrev_b32 v{T0}, 16, v{XR+q}")
        A(f"v_and_b32 v{T1}, 0xffff0000, v{XR+q}")
        A(f"v_add_f32 v{ACC+2*q}, v{ACC+2*q}, v{T0}")
        A(f"v_add_f32 v{ACC+2*q+1}, v{ACC+2*q+1}, v{T1}")
    A("s_waitcnt lgkmcnt(0)")
    for q in range(8): A(f"v_pk_add_f32 {v(ACC+2*q,2)}, {v(ACC+2*q,2)}, {v(RCV+2*q,2)}")
    for q in range(8): A(f"v_cvt_pk_bf16_f32 v{HP+q}, v{ACC+2*q}, v{ACC+2*q+1}")
    A(f"v_and_b32 v{T0}, 1, v{GG}")
    A(f"v_lshlrev_b32 v{T0}, 14, v{T0}")
    A(f"v_lshl_add_u32 v{T0}, v{HH}, 8, v{T0}")
    A(f"v_lshl_add_u32 v{T0}, v{L16}, 4, v{T0}")
    A("s_lshl_b32 s17, s19, 15")
    A(f"s_lshl_b32 s28, s{CB}, 1")
    A(f"s_add_u32 s28, s28, s{KH}")
    A("s_lshl_b32 s29, s28, 10")
    A("s_add_u32 s17, s17, s29")
    A(f"s_add_u32 s17, s17, {hex(WS_HF)}")
    A(f"buffer_store_dwordx4 {v(HP,4)}, v{T0}, s[20:23], s17 offen sc1")
    A(f"buffer_store_dwordx4 {v(HP+4,4)}, v{T0}, s[20:23], s17 offen offset:512 sc1")
    SM, SQ = RCV, RCV + 2
    A(f"v_pk_add_f32 {v(SM,2)}, {v(ACC,2)}, {v(ACC+2,2)}")
    A(f"v_pk_mul_f32 {v(SQ,2)}, {v(ACC,2)}, {v(ACC,2)}")
    for q in range(1, 8):
        if q > 1: A(f"v_pk_add_f32 {v(SM,2)}, {v(SM,2)}, {v(ACC+2*q,2)}")
        A(f"v_pk_fma_f32 {v(SQ,2)}, {v(ACC+2*q,2)}, {v(ACC+2*q,2)}, {v(SQ,2)}")
    A(f"v_add_f32 v{SM}, v{SM}, v{SM+1}")
    A(f"v_add_f32 v{SM+1}, v{SQ}, v{SQ+1}")
    for x_ in (SM, SM + 1):
        A(f"v_mov_b32 v{T0}, v{x_}")
        A(f"v_permlane32_swap_b32 v{x_}, v{T0}")
        A(f"v_add_f32 v{x_}, v{x_}, v{T0}")
    A(f"v_and_b32 v{SM+1}, 0x7fffffff, v{SM+1}")
    A(f"v_lshlrev_b32 v{T0}, 3, v{II}")
    A("s_lshl_b32 s17, s19, 12")
    A("s_lshl_b32 s29, s28, 8")
    A("s_add_u32 s17, s17, s29")
    A(f"s_add_u32 s17, s17, {hex(WS_ST3)}")
    A("s_waitcnt vmcnt(0)")
    A("s_mov_b32 exec_hi, 0")
    A(f"buffer_store_dwordx2 {v(SM,2)}, v{T0}, s[20:23], s17 offen sc1")
    A("s_mov_b64 exec, -1")
    A("s_barrier")
    stamp(A, 2)
    VT4 = AD + 14
    A(f"v_lshrrev_b32 v{T0}, 2, v{L16}")
    A(f"v_lshl_add_u32 v{T0}, v{HH}, 4, v{T0}")
    A(f"v_and_b32 v{T1}, 1, v{GG}")
    A(f"v_lshl_add_u32 v{T0}, v{T1}, 2, v{T0}")
    A(f"s_lshl_b32 s17, s{KH}, 8")
    A(f"v_add_u32 v{T0}, s17, v{T0}")
    A(f"v_mul_u32_u24 v{T0}, 224, v{T0}")
    A(f"v_and_b32 v{T1}, 3, v{LANE}")
    A(f"v_lshl_add_u32 v{VT4}, v{T1}, 3, v{T0}")
    HFR, AC4, CS, Z2V, ONES = W0, W0 + 64, W0 + 120, W0 + 148, W0 + 176
    NMU, RS = W0 + 180, W0 + 182
    STG = W0 + 184
    for q in range(4): A(f"v_mov_b32 v{ONES+q}, 0x3f803f80")
    def load_win():
        for ks in range(8):
            for tau in range(7):
                for a_ in range(2):
                    A(f"ds_read_b64_tr_b16 {a((ks*7+tau)*4+2*a_,2)}, v{VT4} offset:{ks*7168+a_*1792+tau*32}")
        A("s_waitcnt lgkmcnt(0)")
        for ks in range(8):
            for tau in range(7):
                c_ = "0" if ks == 0 else v(CS+4*tau,4)
                A(f"v_mfma_f32_16x16x32_bf16 {v(CS+4*tau,4)}, {a((ks*7+tau)*4,4)}, {v(ONES,4)}, {c_}")
        exchange(CS, AC4, 7)
        A("s_waitcnt lgkmcnt(0)")
        for q in range(14): A(f"v_pk_add_f32 {v(CS+2*q,2)}, {v(CS+2*q,2)}, {v(AC4+2*q,2)}")
    def gemm4(waits):
        for ks in range(8):
            if waits is not None: A(f"s_waitcnt vmcnt({waits + 14 - 2*ks})")
            for tau in range(7):
                for p in range(2):
                    d_ = AC4 + 28*p + 4*tau
                    c_ = "0" if ks == 0 else v(d_,4)
                    A(f"v_mfma_f32_16x16x32_bf16 {v(d_,4)}, {a((ks*7+tau)*4,4)}, {v(HFR+8*ks+4*p,4)}, {c_}")
        A("s_barrier")
        exchange(AC4 + 28, AC4 + 28, 7)
    def gelu(dst):
        E = AC4 + 28
        A("s_waitcnt lgkmcnt(0)")
        for q in range(14): A(f"v_pk_add_f32 {v(AC4+2*q,2)}, {v(AC4+2*q,2)}, {v(E+2*q,2)}")
        for q in range(14): A(f"v_pk_fma_f32 {v(AC4+2*q,2)}, {v(CS+2*q,2)}, {v(NMU,2)}, {v(AC4+2*q,2)}")
        for q in range(14): A(f"v_pk_mul_f32 {v(AC4+2*q,2)}, {v(AC4+2*q,2)}, {v(RS,2)}")
        for q in range(14): A(f"v_pk_mul_f32 {v(E+2*q,2)}, {v(AC4+2*q,2)}, {v(AC4+2*q,2)}")
        for q in range(14): A(f"v_pk_fma_f32 {v(E+2*q,2)}, {v(E+2*q,2)}, s[36:37], {v(T4,2)}")
        for q in range(14): A(f"v_pk_mul_f32 {v(E+2*q,2)}, {v(E+2*q,2)}, {v(AC4+2*q,2)}")
        for q in range(28): A(f"v_exp_f32 v{E+q}, v{E+q}")
        for q in range(14): A(f"v_pk_add_f32 {v(E+2*q,2)}, {v(E+2*q,2)}, 1.0 op_sel_hi:[1,0]")
        for q in range(28): A(f"v_rcp_f32 v{E+q}, v{E+q}")
        for q in range(14): A(f"v_pk_mul_f32 {v(dst+2*q,2)}, {v(E+2*q,2)}, {v(AC4+2*q,2)}")
    A(f"s_mov_b32 s36, {f32(-GB)}")
    A(f"s_mov_b32 s37, {f32(-GB)}")
    load_win()
    A(f"v_lshlrev_b32 v{T1}, 10, v{GG}")
    A(f"v_lshl_add_u32 v{T1}, v{L16}, 3, v{T1}")
    A("s_lshl_b32 s17, s19, 12")
    A(f"s_lshl_b32 s28, s{KH}, 7")
    A("s_add_u32 s17, s17, s28")
    A(f"s_add_u32 s17, s17, {hex(WS_ST3)}")
    poll(A, name, "A", [f"buffer_load_dwordx2 {v(STG+2*q,2)}, v{T1}, s[20:23], s17 offen offset:{q*256} sc1" for q in range(4)],
         None, [STG+1, STG+3, STG+5, STG+7])
    stamp(A, 3)
    A("s_lshl_b32 s17, s19, 15")
    A(f"s_lshl_b32 s28, s{KH}, 13")
    A("s_add_u32 s17, s17, s28")
    A(f"s_add_u32 s17, s17, {hex(WS_HF)}")
    A(f"s_lshl_b32 s28, s{KH}, 14")
    A(f"v_add_u32 v{T2}, s28, v{VL16}")
    A(f"v_xor_b32 v{T3}, 0x4000, v{T2}")
    for ks in range(8):
        if ks == 4: A("s_add_u32 s17, s17, 4096")
        for p in range(2):
            A(f"buffer_load_dwordx4 {v(HFR+8*ks+4*p,4)}, v{(T2,T3)[p]}, s[20:23], s17 offen offset:{(ks%4)*1024} sc1")
    dma_win(0)
    A(f"v_pk_add_f32 {v(STG,2)}, {v(STG,2)}, {v(STG+2,2)}")
    A(f"v_pk_add_f32 {v(STG+4,2)}, {v(STG+4,2)}, {v(STG+6,2)}")
    A(f"v_pk_add_f32 {v(STG,2)}, {v(STG,2)}, {v(STG+4,2)}")
    red_g(A, [STG, STG+1])
    ln_from_sums(A, STG, STG+1, D, NMU, RS)
    A(f"v_mov_b32 v{NMU+1}, v{NMU}")
    A(f"v_mov_b32 v{RS+1}, v{RS}")
    A(f"v_mov_b32 v{T4}, {f32(-GA)}")
    A(f"v_mov_b32 v{T5}, {f32(-GA)}")
    gemm4(28)
    gelu(Z2V)
    A(f"v_pk_add_f32 {v(STG,2)}, {v(Z2V,2)}, {v(Z2V+2,2)}")
    A(f"v_pk_mul_f32 {v(STG+2,2)}, {v(Z2V,2)}, {v(Z2V,2)}")
    for q in range(1, 14):
        if q > 1: A(f"v_pk_add_f32 {v(STG,2)}, {v(STG,2)}, {v(Z2V+2*q,2)}")
        A(f"v_pk_fma_f32 {v(STG+2,2)}, {v(Z2V+2*q,2)}, {v(Z2V+2*q,2)}, {v(STG+2,2)}")
    A(f"v_add_f32 v{STG}, v{STG}, v{STG+1}")
    A(f"v_add_f32 v{STG+1}, v{STG+2}, v{STG+3}")
    red_g(A, [STG, STG+1])
    A(f"v_and_b32 v{STG+1}, 0x7fffffff, v{STG+1}")
    A(f"s_lshl_b32 s43, s{RB}, 2")
    A(f"s_add_u32 s43, s43, s{WV}")
    A("s_lshl_b32 s17, s43, 10")
    A(f"s_add_u32 s17, s17, {hex(WS_ST4)}")
    A(f"s_lshl_b32 s28, s{CB}, 7")
    A("s_add_u32 s28, s28, s17")
    A(f"v_lshlrev_b32 v{T1}, 3, v{L16}")
    A("s_mov_b32 exec_hi, 0"); A("s_mov_b32 exec_lo, 0xffff")
    A(f"buffer_store_dwordx2 {v(STG,2)}, v{T1}, s[20:23], s28 offen sc1")
    A("s_mov_b64 exec, -1")
    stamp(A, 4)
    A("s_waitcnt vmcnt(1)")
    A("s_barrier")
    load_win()
    gemm4(None)
    gelu(AC4)
    for q in range(14): A(f"v_cvt_pk_bf16_f32 v{Z1P+q}, v{AC4+2*q}, v{AC4+2*q+1}")
    A(f"v_lshl_add_u32 v{T1}, v{GG}, 8, v{T1}")
    poll(A, name, "B", [f"buffer_load_dwordx2 {v(STG+2*q,2)}, v{T1}, s[20:23], s17 offen offset:{q*128} sc1" for q in range(2)],
         None, [STG+1, STG+3])
    A(f"v_pk_add_f32 {v(STG,2)}, {v(STG,2)}, {v(STG+2,2)}")
    red_g(A, [STG, STG+1])
    ln_from_sums(A, STG, STG+1, FH, NMU, RS)
    A(f"v_mul_f32 v{NMU}, v{NMU}, v{RS}")
    A(f"v_mov_b32 v{RS+1}, v{RS}")
    A(f"v_mov_b32 v{NMU+1}, v{NMU}")
    for q in range(14): A(f"v_pk_fma_f32 {v(Z2V+2*q,2)}, {v(Z2V+2*q,2)}, {v(RS,2)}, {v(NMU,2)}")
    for q in range(14): A(f"v_cvt_pk_bf16_f32 v{AC4+q}, v{Z2V+2*q}, v{Z2V+2*q+1}")
    RSB = 264
    A(f"v_mul_u32_u24 v{T0}, {RSB}, v{L16}")
    A(f"v_lshl_add_u32 v{T0}, v{GG}, 3, v{T0}")
    A(f"v_add_u32 v{T0}, s42, v{T0}")
    for tau in range(7): A(f"ds_write_b64 v{T0}, {v(AC4+2*tau,2)} offset:{tau*32}")
    A(f"v_and_b32 v{T1}, 1, v{GG}")
    A(f"v_lshrrev_b32 v{T2}, 2, v{L16}")
    A(f"v_lshl_add_u32 v{T2}, v{T1}, 3, v{T2}")
    A(f"v_mul_u32_u24 v{T2}, {RSB}, v{T2}")
    A(f"v_lshl_add_u32 v{T2}, v{HH}, 5, v{T2}")
    A(f"v_and_b32 v{T3}, 3, v{LANE}")
    A(f"v_lshl_add_u32 v{T2}, v{T3}, 3, v{T2}")
    A(f"v_add_u32 v{T2}, s42, v{T2}")
    A("s_waitcnt lgkmcnt(0)")
    for u in range(4):
        for a_ in range(2):
            A(f"ds_read_b64_tr_b16 {v(Z2V+4*u+2*a_,2)}, v{T2} offset:{u*64 + a_*4*RSB}")
    A(f"v_lshlrev_b32 v{T0}, 10, v{HH}")
    A(f"v_lshl_add_u32 v{T0}, v{II}, 4, v{T0}")
    A(f"s_lshl_b32 s17, s{CB}, 6")
    A("s_add_u32 s17, s17, s19")
    A("s_mul_i32 s17, s17, 7168")
    A(f"s_lshl_b32 s28, s{KH}, 9")
    A("s_add_u32 s17, s17, s28")
    A(f"s_add_u32 s17, s17, {hex(WS_Z2)}")
    A("s_add_u32 s28, s17, 4096")
    A("s_waitcnt lgkmcnt(0)")
    for u in range(4):
        if u == 3: A("s_mov_b32 exec_hi, 0")
        A(f"buffer_store_dwordx4 {v(Z2V+4*u,4)}, v{T0}, s[20:23], s{17 if u < 2 else 28} offen offset:{(u%2)*2048} sc1")
    A(f"s_lshl_b32 s17, s{CB}, 9")
    A("s_lshl_b32 s28, s43, 2")
    A("s_add_u32 s17, s17, s28")
    A(f"s_add_u32 s17, s17, {hex(WS_FC)}")
    A(f"v_mov_b32 v{T0}, 0")
    A(f"v_mov_b32 v{T1}, 1")
    A("s_mov_b64 exec, 1")
    A("s_waitcnt vmcnt(0)")
    A(f"buffer_store_dword v{T1}, v{T0}, s[20:23], s17 offen sc1")
    A("s_mov_b64 exec, -1")
    stamp(A, 5)
    A("s_barrier")
    srd(A, 24, 46, S * S * 2)
    VDS0, VDS1 = AD + 5, AD + 6
    A(f"v_lshrrev_b32 v{T0}, 3, v{LANE}")
    A(f"v_lshlrev_b32 v{T0}, 12, v{T0}")
    A(f"v_xor_b32 v{T1}, v{GG}, v{LANE}")
    A(f"v_and_b32 v{T1}, 7, v{T1}")
    A(f"v_lshl_add_u32 v{T0}, v{T1}, 4, v{T0}")
    A(f"s_lshl_b32 s17, s{RB}, 18")
    A(f"s_lshl_b32 s28, s{WV}, 10")
    A("s_add_u32 s17, s17, s28")
    A(f"v_add_u32 v{VDS0}, s17, v{T0}")
    A(f"v_xor_b32 v{VDS1}, 64, v{VDS0}")
    A(f"s_lshl_b32 s18, s{WV}, 15")
    VRS = AD + 7
    A(f"v_lshrrev_b32 v{T0}, 1, v{L16}")
    A(f"v_xor_b32 v{T0}, v{T0}, v{GG}")
    A(f"v_lshlrev_b32 v{T0}, 4, v{T0}")
    A(f"v_lshl_add_u32 v{T0}, v{L16}, 7, v{T0}")
    A(f"s_lshl_b32 s17, s{WV}, 11")
    A("s_add_u32 s17, s17, s18")
    A(f"v_add_u32 v{T0}, s17, v{T0}")
    RA = W0
    for p in range(4):
        for u in range(2):
            A(f"v_xor_b32 v{RA+2*p+u}, {p*2048 + u*64}, v{T0}")
    for rnd in range(2):
        for b in range(4):
            for n in range(8):
                A(f"s_add_u32 m0, s18, {b*8192 + n*1024}")
                A(f"s_mov_b32 s30, {n*8*4096 + (rnd*4+b)*128}")
                A(f"buffer_load_dwordx4 v{(VDS0,VDS1)[n&1]}, s[24:27], s30 offen lds")
        for b in range(4):
            A(f"s_waitcnt vmcnt({24-8*b})")
            for u in range(2):
                ks = (rnd*4+b)*2 + u
                for p in range(4):
                    A(f"ds_read_b128 {a(ks*16+4*p,4)}, v{RA+2*p+u} offset:{b*8192}")
        A("s_waitcnt lgkmcnt(0)")
    BS = AD + 9
    srd(A, 24, 48, S * 2)
    A("s_lshl_b32 s17, s43, 5")
    A(f"v_lshlrev_b32 v{T0}, 1, v{L16}")
    A(f"buffer_load_ushort v{BS}, v{T0}, s[24:27], s17 offen")
    A(f"s_lshl_b32 s17, s{CB}, 9")
    A(f"s_lshl_b32 s28, s{WV}, 7")
    A("s_add_u32 s17, s17, s28")
    A(f"s_add_u32 s17, s17, {hex(WS_FC)}")
    A(f"v_lshlrev_b32 v{T1}, 2, v{II}")
    poll(A, name, "C", [f"buffer_load_dword v{T2}, v{T1}, s[20:23], s17 offen sc1"], None, [T2])
    stamp(A, 6)
    AC5, ZF = W0, W0 + 112
    A(f"s_lshl_b32 s17, s{CB}, 6")
    A(f"s_lshl_b32 s28, s{WV}, 4")
    A("s_add_u32 s17, s17, s28")
    A("s_mul_i32 s17, s17, 7168")
    A(f"s_add_u32 s17, s17, {hex(WS_Z2)}")
    def ldz(ks, tau):
        if ks >= 16: return
        if tau == 0: A(f"s_add_u32 s28, s17, {ks*7168}")
        if tau == 4: A(f"s_add_u32 s28, s17, {ks*7168+4096}")
        A(f"buffer_load_dwordx4 {v(ZF+28*(ks%3)+4*tau,4)}, v{VL16}, s[20:23], s28 offen offset:{(tau%4)*1024} sc1")
    for ks in range(3):
        for tau in range(7): ldz(ks, tau)
    for ks in range(16):
        for tau in range(7):
            total = 16 * 7
            issued = min(total, (ks + 3) * 7 + tau)
            A(f"s_waitcnt vmcnt({issued - (ks*7+tau) - 1})")
            for p in range(4):
                d_ = AC5 + 28*p + 4*tau
                c_ = "0" if ks == 0 else v(d_,4)
                A(f"v_mfma_f32_16x16x32_bf16 {v(d_,4)}, {v(ZF+28*(ks%3)+4*tau,4)}, {a(ks*16+4*p,4)}, {c_}")
            ldz(ks + 3, tau)
    A("s_barrier")
    for p in range(1, 4):
        A(f"s_xor_b32 s17, s{WV}, {p}")
        A("s_mul_i32 s17, s17, 21504")
        A(f"v_add_u32 v{T0}, s17, v{VL16}")
        for q in range(7): A(f"ds_write_b128 v{T0}, {v(AC5+28*p+4*q,4)} offset:{(p-1)*7168+q*1024}")
    A(f"s_mul_i32 s17, s{WV}, 21504")
    A(f"v_add_u32 v{T0}, s17, v{VL16}")
    A("s_waitcnt lgkmcnt(0)")
    A("s_barrier")
    for p in range(1, 4):
        for q in range(7): A(f"ds_read_b128 {v(AC5+28*p+4*q,4)}, v{T0} offset:{(p-1)*7168+q*1024}")
    A(f"v_lshlrev_b32 v{T4}, 16, v{BS}")
    A(f"v_mov_b32 v{T5}, v{T4}")
    for q in range(14): A(f"v_pk_add_f32 {v(AC5+2*q,2)}, {v(AC5+2*q,2)}, {v(T4,2)}")
    for q in range(14):
        A(f"v_lshlrev_b32 v{ZF+2*q}, 16, v{Z1P+q}")
        A(f"v_and_b32 v{ZF+2*q+1}, 0xffff0000, v{Z1P+q}")
    for p in range(1, 4):
        A(f"s_waitcnt lgkmcnt({14-7*(p-1)})")
        for q in range(14): A(f"v_pk_add_f32 {v(AC5+2*q,2)}, {v(AC5+2*q,2)}, {v(AC5+28*p+2*q,2)}")
    A("s_barrier")
    srd(A, 24, 50, FH * D * 2)
    A(f"s_mul_i32 s17, s{WV}, {224*1024}")
    A(f"v_add_u32 v{VDO}, s17, v{VDW}")
    for q in range(14): A(f"v_pk_mul_f32 {v(AC5+2*q,2)}, {v(AC5+2*q,2)}, {v(ZF+2*q,2)}")
    YP = ZF + 28
    for q in range(14): A(f"v_cvt_pk_bf16_f32 v{YP+q}, v{AC5+2*q}, v{AC5+2*q+1}")
    A(f"v_lshlrev_b32 v{T0}, 9, v{GG}")
    A(f"v_lshl_add_u32 v{T0}, v{L16}, 4, v{T0}")
    A("s_mul_i32 s17, s19, 56")
    A(f"s_mul_i32 s28, s{CB}, 7")
    A("s_add_u32 s17, s17, s28")
    A("s_lshl_b32 s17, s17, 10")
    A(f"s_lshl_b32 s28, s{KH}, 8")
    A("s_add_u32 s17, s17, s28")
    A(f"s_add_u32 s17, s17, {hex(WS_Y)}")
    A("s_add_u32 s28, s17, 4096")
    for u in range(3):
        A(f"buffer_store_dwordx4 {v(YP+4*u,4)}, v{T0}, s[20:23], s{17 if u < 2 else 28} offen offset:{(u%2)*2048} sc1")
    A(f"v_and_b32 v{T1}, 0x3ff, v{T0}")
    A(f"v_lshl_add_u32 v{T1}, v{HH}, 3, v{T1}")
    A(f"buffer_store_dwordx2 {v(YP+12,2)}, v{T1}, s[20:23], s28 offen offset:2048 sc1")
    A("s_lshl_b32 s17, s19, 8")
    A(f"s_lshr_b32 s28, s{CB}, 2")
    A("s_lshl_b32 s28, s28, 7")
    A("s_add_u32 s17, s17, s28")
    A(f"s_and_b32 s28, s{CB}, 3")
    A("s_lshl_b32 s28, s28, 1")
    A(f"s_add_u32 s28, s28, s{KH}")
    A("s_lshl_b32 s28, s28, 2")
    A("s_add_u32 s17, s17, s28")
    A(f"s_add_u32 s17, s17, {hex(WS_FD)}")
    A(f"v_mov_b32 v{T0}, 0")
    A(f"v_mov_b32 v{T1}, 1")
    A("s_mov_b64 exec, 1")
    A("s_waitcnt vmcnt(0)")
    A(f"buffer_store_dword v{T1}, v{T0}, s[20:23], s17 offen sc1")
    A("s_mov_b64 exec, -1")
    stamp(A, 7)
    dma128(A, VDO, 28, 1024, 42, 24)
    A(f"s_mul_i32 s17, s{KH}, {448*128}")
    A(f"v_add_u32 v{T2}, s17, v{VT0}")
    A(f"v_xor_b32 v{T3}, 64, v{T2}")
    A("s_waitcnt vmcnt(0)")
    A("s_barrier")
    for c in range(4):
        for kap in range(7):
            ks = c * 7 + kap
            for p in range(2):
                for a_ in range(2):
                    row = 112*c + (32*(kap>>1) + 8*(kap&1) + 16*a_ if kap < 6 else 96 + 8*a_)
                    A(f"ds_read_b64_tr_b16 {a(8*ks+4*p+2*a_,2)}, v{(T2,T3)[p]} offset:{row*128}")
    A("s_lshl_b32 s17, s19, 8")
    A(f"s_lshl_b32 s28, s{KH}, 7")
    A("s_add_u32 s17, s17, s28")
    A(f"s_add_u32 s17, s17, {hex(WS_FD)}")
    A(f"v_and_b32 v{T1}, 7, v{LANE}")
    A(f"v_lshlrev_b32 v{T1}, 2, v{T1}")
    poll(A, name, "D", [f"buffer_load_dword v{T4}, v{T1}, s[20:23], s17 offen sc1"], None, [T4])
    YF, AC6, RC6 = W0, W0 + 112, W0 + 144
    A("s_mul_i32 s17, s19, 56")
    A(f"s_mul_i32 s28, s{KH}, 28")
    A("s_add_u32 s17, s17, s28")
    A("s_lshl_b32 s17, s17, 10")
    A(f"s_add_u32 s17, s17, {hex(WS_Y)}")
    for ks in range(28):
        if ks % 4 == 0 and ks: A("s_add_u32 s17, s17, 4096")
        A(f"buffer_load_dwordx4 {v(YF+4*ks,4)}, v{VL16}, s[20:23], s17 offen offset:{(ks%4)*1024} sc1")
    A("s_waitcnt lgkmcnt(0)")
    for ks in range(28):
        A(f"s_waitcnt vmcnt({27-ks})")
        for p in range(2):
            c_ = "0" if ks == 0 else v(AC6+16*p,16)
            A(f"v_mfma_f32_32x32x16_bf16 {v(AC6+16*p,16)}, {a(8*ks+4*p,4)}, {v(YF+4*ks,4)}, {c_}")
    exchange(AC6 + 16, RC6, 4)
    for q in range(8):
        A(f"v_lshlrev_b32 v{T0}, 16, v{HP+q}")
        A(f"v_and_b32 v{T1}, 0xffff0000, v{HP+q}")
        A(f"v_add_f32 v{AC6+2*q}, v{AC6+2*q}, v{T0}")
        A(f"v_add_f32 v{AC6+2*q+1}, v{AC6+2*q+1}, v{T1}")
    A("s_waitcnt lgkmcnt(0)")
    for q in range(8): A(f"v_pk_add_f32 {v(AC6+2*q,2)}, {v(AC6+2*q,2)}, {v(RC6+2*q,2)}")
    for q in range(8): A(f"v_cvt_pk_bf16_f32 v{RC6+q}, v{AC6+2*q}, v{AC6+2*q+1}")
    for e in range(2):
        A(f"v_permlane32_swap_b32 v{RC6+4*e}, v{RC6+4*e+2}")
        A(f"v_permlane32_swap_b32 v{RC6+4*e+1}, v{RC6+4*e+3}")
    srd(A, 24, 52, S * D * 2)
    A(f"v_lshl_add_u32 v{T0}, v{HH}, 4, v{VXO}")
    A(f"buffer_store_dwordx4 {v(RC6,4)}, v{T0}, s[24:27], 0 offen")
    A(f"buffer_store_dwordx4 {v(RC6+4,4)}, v{T0}, s[24:27], 0 offen offset:32")
    stamp_flush(A, name, 2, 8)
    A.label(f"{name}_end")
    A("s_endpgm")
    return A.finish() + kernel_desc(name, 256, 256), (name, 256, 256, 163840)
```

```python
from build import *
from k1_qkv import gen_k1
from k2_attn import gen_k2
from k3_tail import gen_k3
def gen_empty(name="k9_empty_kernel"):
    A = Asm(); kernel_head(A, name); A("s_endpgm")
    return A.finish() + kernel_desc(name, 8), (name, 256, 256, 0)
base = [gen_k1(), gen_k2(), gen_k3()]
e = gen_empty()
build(base + [e, e, e, e], "e1.s")
build([e, e, e, e] + base, "e2.s")
build(base, "e0.s")
```

```python
from asmlib import *

NAME = "sequential_preLN__mha_block__mixer_gmlp__prompt"
KA_X, KA_WQKV, KA_WO, KA_BX, KA_WIN, KA_WSP, KA_BSP, KA_WOUT, KA_OUT, KA_DBG, KA_WS = [8 * i for i in range(11)]
S, D, H, DH, FH = 2048, 512, 32, 16, 896
WS_QF = 0x000000
WS_KF = 0x200000
WS_VF = 0x400000
WS_KN = 0x600000
WS_OF = 0x700000
WS_HF = 0x900000
WS_Z2 = 0xB00000
WS_Z1 = 0xF00000
WS_Y  = 0x1300000
WS_SY = 0x1700000
WS_ST3 = WS_SY
WS_ST4 = WS_SY + 0x40000
WS_FC = WS_SY + 0x60000
WS_FD = WS_SY + 0x64000
WS_FO = WS_SY + 0x68000
SPIN_MAX = 100000
WS_SIZE = 0x2000000

LOG2E = 1.4426950408889634
import struct
def f32(x):
    return "0x%08x" % struct.unpack("<I", struct.pack("<f", x))[0]

def srd(A, d, base, nbytes, off=0):
    if off:
        A(f"s_add_u32 s{d}, s{base}, {hex(off)}")
        A(f"s_addc_u32 s{d+1}, s{base+1}, 0")
    else:
        A(f"s_mov_b32 s{d}, s{base}")
        A(f"s_mov_b32 s{d+1}, s{base+1}")
    A(f"s_mov_b32 s{d+2}, {hex(nbytes)}")
    A(f"s_mov_b32 s{d+3}, 0x00020000")

def kernel_head(A, name):
    A.raw(".text")
    A.raw(f".globl {name}")
    A.raw(".p2align 8")
    A.raw(f".type {name},@function")
    A.label(name)

def kernel_desc(name, vgpr, agpr=0, sgpr=102):
    acc = (vgpr + 3) // 4 * 4
    nfv = acc + agpr if agpr else vgpr
    return f""".section .rodata,"a"
.p2align 6
.amdhsa_kernel {name}
  .amdhsa_next_free_vgpr {nfv}
  .amdhsa_next_free_sgpr {sgpr}
  .amdhsa_accum_offset {acc}
  .amdhsa_group_segment_fixed_size 0
  .amdhsa_kernarg_size 88
  .amdhsa_user_sgpr_count 2
  .amdhsa_user_sgpr_kernarg_segment_ptr 1
  .amdhsa_system_sgpr_workgroup_id_x 1
.end_amdhsa_kernel
"""

class VAlloc:
    def __init__(self, start=0, limit=256):
        self.n = start; self.limit = limit; self.hi = start
    def __call__(self, n=1, align=None):
        al = align or (4 if n >= 4 else (2 if n >= 2 else 1))
        self.n = (self.n + al - 1) // al * al
        x = self.n
        self.n += n
        assert self.n <= self.limit, "out of registers"
        self.hi = max(self.hi, self.n)
        return x

import os
STAMP = bool(int(os.environ.get("STAMP", "0")))
WS_STAMP = 0x1900000
def stamp(A, slot):
    if not STAMP: return
    A("s_memrealtime s[96:97]")
    A("s_memtime s[98:99]")
    A("s_waitcnt lgkmcnt(0)")
    A(f"s_mov_b32 s{60+2*slot}, s96")
    A(f"s_mov_b32 s{61+2*slot}, s98")
def stamp_flush(A, name, kidx, nslots):
    if not STAMP: return
    A("s_mov_b64 exec, -1")
    A("s_waitcnt vmcnt(0)")
    stamp(A, nslots)
    A(f"s_load_dwordx2 s[94:95], s[0:1], {KA_WS}")
    A("s_lshl_b32 s100, s2, 7")
    A(f"s_add_u32 s100, s100, {hex(WS_STAMP + kidx*32768)}")
    A("v_mov_b32 v3, s100")
    A("v_cmp_eq_u32 vcc, 0, v0")
    A("s_and_b64 exec, exec, vcc")
    A(f"s_cbranch_execz {name}_end")
    A("s_waitcnt lgkmcnt(0)")
    for k in range(nslots + 1):
        A(f"v_mov_b32 v4, s{60+2*k}")
        A(f"v_mov_b32 v5, s{61+2*k}")
        A(f"global_store_dwordx2 v3, v[4:5], s[94:95] offset:{8*k}")
```

```python
from common import *
WARM = False
NT = os.environ.get('K1NT', 'nt')
CODEPF = int(os.environ.get('CODEPF', '1'))
DSTART = int(os.environ.get('K1DS', '4'))

def gen_k1(name="k1_qkv_kernel"):
    A = Asm()
    kernel_head(A, name)
    V = VAlloc(1)
    A("s_cmp_ge_u32 s2, 256")
    A(f"s_cbranch_scc1 {name}_end")
    stamp(A, 0)
    A(f"s_load_dwordx4 s[4:7], s[0:1], {KA_X}")
    A(f"s_load_dwordx2 s[8:9], s[0:1], {KA_WS}")
    if WARM:
        A(f"s_load_dwordx2 s[32:33], s[0:1], {KA_WO}")
        A(f"s_load_dwordx4 s[36:39], s[0:1], {KA_WIN}")
        A(f"s_load_dwordx2 s[40:41], s[0:1], {KA_WOUT}")
    A("s_and_b32 s10, s2, 7")
    A("s_lshr_b32 s11, s2, 3")
    A("s_lshr_b32 s12, s10, 1")
    A("s_lshl_b32 s12, s12, 3")
    A("s_and_b32 s28, s11, 7")
    A("s_add_u32 s12, s12, s28")
    A("s_and_b32 s13, s10, 1")
    A("s_lshl_b32 s13, s13, 2")
    A("s_lshr_b32 s14, s11, 3")
    A("s_add_u32 s13, s13, s14")
    A("s_lshl_b32 s14, s14, 1")
    A("s_xor_b32 s28, s28, s14")
    lane, t0, t1, t2 = V(), V(), V(), V()
    A(f"v_and_b32 v{lane}, 63, v0")
    A(f"v_lshrrev_b32 v{t0}, 6, v0")
    A(f"v_readfirstlane_b32 s14, v{t0}")
    A("s_and_b32 s15, s14, 1")
    A("s_lshr_b32 s16, s14, 1")
    vx, vw = V(), V()
    A("s_lshl_b32 s18, s12, 6")
    A("s_lshl_b32 s19, s14, 4")
    A("s_add_u32 s18, s18, s19")
    A(f"v_lshrrev_b32 v{t0}, 3, v{lane}")
    A(f"v_add_u32 v{t1}, s18, v{t0}")
    A(f"v_lshlrev_b32 v{t1}, 10, v{t1}")
    A(f"v_and_b32 v{t2}, 7, v{lane}")
    A(f"v_lshl_add_u32 v{vx}, v{t2}, 4, v{t1}")
    A(f"v_add_u32 v{t1}, s19, v{t0}")
    A(f"v_mul_u32_u24 v{t1}, 3072, v{t1}")
    A(f"v_bfe_u32 v{t0}, v{lane}, 4, 1")
    A(f"v_lshlrev_b32 v{t0}, 2, v{t0}")
    A(f"v_xor_b32 v{vw}, v{t0}, v{t2}")
    A(f"v_lshl_add_u32 v{vw}, v{vw}, 4, v{t1}")
    A("s_lshl_b32 s19, s13, 7")
    A(f"v_add_u32 v{vw}, s19, v{vw}")
    A("s_mul_i32 s17, s14, 6144")
    dummy, vt = V(), V()
    A("s_lshl_b32 s19, s11, 2")
    A("s_add_u32 s19, s19, s14")
    A(f"s_mul_i32 s19, s19, {4*3072}")
    A("s_and_b32 s18, s10, 1")
    A("s_lshl_b32 s18, s18, 9")
    A("s_add_u32 s19, s19, s18")
    A(f"v_lshrrev_b32 v{t0}, 2, v{lane}")
    A(f"v_and_b32 v{t1}, 3, v{lane}")
    A(f"v_lshlrev_b32 v{t1}, 7, v{t1}")
    A(f"v_lshl_add_u32 v{t0}, v{t0}, 10, v{t1}")
    A(f"v_add_u32 v{vt}, s19, v{t0}")
    X = V(128)
    A("s_waitcnt lgkmcnt(0)")
    stamp(A, 1)
    srd(A, 20, 4, S * D * 2)
    srd(A, 24, 6, D * 3 * D * 2)
    XR = lambda s_, u: X + 64 + 8*s_ + 4*u
    for s_ in range(8):
        A(f"s_xor_b32 s30, s28, {s_}")
        A("s_lshl_b32 s30, s30, 7")
        A("s_add_u32 s31, s30, 0x2000")
        A(f"buffer_load_dwordx4 {v(XR(s_,0),4)}, v{vx}, s[20:23], s30 offen {NT}")
        A(f"buffer_load_dwordx4 {v(XR(s_,1),4)}, v{vx}, s[20:23], s31 offen {NT}")
    A("s_mov_b32 exec_hi, 0xffff")
    A(f"buffer_load_dword v{dummy}, v{vt}, s[24:27], 0 offen {NT}")
    A("s_mov_b64 exec, -1")
    stamp(A, 2)
    SLOT = [65536 + 24576*(i%4) for i in range(8)]
    def dma_stage(j):
        out = []
        for c in range(6):
            seg, u = c // 2, c % 2
            l = [f"s_add_u32 m0, s17, {SLOT[j] + c*1024}"]
            if c == 0:
                l = [f"s_xor_b32 s29, s28, {j}", f"s_mul_i32 s29, s29, {64*3072}"] + l
            l.append(f"s_add_u32 s30, s29, {u*8*3072 + seg*1024}")
            l.append(f"buffer_load_dwordx4 v{vw}, s[24:27], s30 offen lds")
            out.append(l)
        return out
    NEARLY = 0
    for j in range(NEARLY):
        for l in dma_stage(j):
            for x_ in l: A(x_)
    pend = [l for j in range(NEARLY, 4) for l in dma_stage(j)]
    nd = 1
    stamp(A, 3)
    st = [V() for _ in range(4)]
    for x_ in st: A(f"v_mov_b32 v{x_}, 0")
    A("s_mov_b32 s34, 0x3f803f80")
    for s_ in range(8):
        A(f"s_waitcnt vmcnt({14 - 2*s_ + nd})")
        if s_ == 0: stamp(A, 4)
        if s_ == 7: stamp(A, 5)
        for q in range(4):
            for u in range(2):
                A(f"v_dot2_f32_bf16 v{st[2*u]}, v{XR(s_,u)+q}, s34, v{st[2*u]}")
                A(f"v_dot2_f32_bf16 v{st[2*u+1]}, v{XR(s_,u)+q}, v{XR(s_,u)+q}, v{st[2*u+1]}")
    for mod in ("quad_perm:[1,0,3,2]", "quad_perm:[2,3,0,1]", "row_half_mirror"):
        for x_ in st:
            A(f"v_add_f32_dpp v{x_}, v{x_}, v{x_} {mod} row_mask:0xf bank_mask:0xf")
    rs = [V(2), V(2)]; nm = [V(2), V(2)]
    for u in range(2):
        A(f"v_mul_f32 v{nm[u]}, {f32(-1.0/D)}, v{st[2*u]}")
        A(f"v_mul_f32 v{st[2*u+1]}, {f32(1.0/D)}, v{st[2*u+1]}")
        A(f"v_fma_f32 v{st[2*u+1]}, -v{nm[u]}, v{nm[u]}, v{st[2*u+1]}")
        A(f"v_max_f32 v{st[2*u+1]}, 0, v{st[2*u+1]}")
        A(f"v_add_f32 v{st[2*u+1]}, {f32(1e-5)}, v{st[2*u+1]}")
        A(f"v_rsq_f32 v{rs[u]}, v{st[2*u+1]}")
    for u in range(2):
        A(f"v_mul_f32 v{nm[u]}, v{nm[u]}, v{rs[u]}")
        A(f"v_mov_b32 v{rs[u]+1}, v{rs[u]}")
        A(f"v_mov_b32 v{nm[u]+1}, v{nm[u]}")
    stamp(A, 6)
    aw = [V(), V()]
    A(f"v_lshrrev_b32 v{t0}, 4, v{lane}")
    A(f"v_xor_b32 v{t0}, v{t0}, v{t2}")
    A(f"v_lshrrev_b32 v{t1}, 3, v{lane}")
    A(f"v_lshlrev_b32 v{t1}, 7, v{t1}")
    A(f"v_lshl_add_u32 v{t0}, v{t0}, 4, v{t1}")
    A("s_lshl_b32 s19, s14, 11")
    A(f"v_add_u32 v{aw[0]}, s19, v{t0}")
    A(f"v_xor_b32 v{aw[1]}, 0x440, v{aw[0]}")
    tp = [V(8), V(8)]
    k = 0
    for s_ in range(8):
        for u in range(2):
            r_, t_ = XR(s_, u), tp[k % 2]
            for q in range(4):
                A(f"v_lshlrev_b32 v{t_+2*q}, 16, v{r_+q}")
                A(f"v_and_b32 v{t_+2*q+1}, 0xffff0000, v{r_+q}")
            for q in range(4): A(f"v_pk_fma_f32 {v(t_+2*q,2)}, {v(t_+2*q,2)}, {v(rs[u],2)}, {v(nm[u],2)}")
            for q in range(4): A(f"v_cvt_pk_bf16_f32 v{r_+q}, v{t_+2*q}, v{t_+2*q+1}")
            A(f"ds_write_b128 v{aw[u]}, {v(r_,4)} offset:{s_*8192}")
            if k >= DSTART:
                for _ in range(2 if k >= 16 - max(0, 12 - (16 - DSTART)) else 1):
                    for x_ in pend.pop(0): A(x_)
                    nd += 1
            k += 1
    npre = nd - 1
    stamp(A, 7)
    hh, ii, l16 = V(), V(), V()
    A(f"v_lshrrev_b32 v{hh}, 5, v{lane}")
    A(f"v_and_b32 v{ii}, 31, v{lane}")
    A(f"v_and_b32 v{l16}, 15, v{lane}")
    axr = [V() for _ in range(4)]
    A("s_lshl_b32 s19, s15, 12")
    A(f"v_lshl_add_u32 v{t0}, v{ii}, 7, s19")
    A(f"v_lshrrev_b32 v{t1}, 1, v{l16}")
    A(f"v_xor_b32 v{t1}, v{t1}, v{hh}")
    A(f"v_lshl_add_u32 v{axr[0]}, v{t1}, 4, v{t0}")
    for s_ in range(1, 4): A(f"v_xor_b32 v{axr[s_]}, {32*s_}, v{axr[0]}")
    awr = [V() for _ in range(3)]
    A(f"v_lshrrev_b32 v{t0}, 2, v{l16}")
    A(f"v_lshl_add_u32 v{t0}, v{hh}, 3, v{t0}")
    A(f"v_lshlrev_b32 v{t0}, 7, v{t0}")
    A(f"v_lshrrev_b32 v{t1}, 4, v{ii}")
    A(f"v_lshl_add_u32 v{t0}, v{t1}, 5, v{t0}")
    A(f"v_and_b32 v{t1}, 3, v{lane}")
    A(f"v_lshl_add_u32 v{t0}, v{t1}, 3, v{t0}")
    A(f"v_lshrrev_b32 v{t1}, 3, v{l16}")
    A(f"v_xor_b32 v{t1}, s16, v{t1}")
    A(f"v_lshl_add_u32 v{awr[0]}, v{t1}, 6, v{t0}")
    A(f"v_add_u32 v{awr[1]}, 0x10000, v{awr[0]}")
    A(f"v_add_u32 v{awr[2]}, 0x20000, v{awr[0]}")
    acc = [V(16) for _ in range(3)]
    wf = [[V(4) for _ in range(3)] for _ in range(2)]
    A(f"s_waitcnt vmcnt({npre - 6}) lgkmcnt(0)")
    A("s_barrier")
    stamp(A, 8)
    def rd_w(k, seg):
        j, s_ = k // 4, k % 4
        base = SLOT[j] + s_ * 6144 + seg * 2048
        for a_ in range(2):
            o = base + 512 * a_
            A(f"ds_read_b64_tr_b16 {v(wf[k%2][seg]+2*a_,2)}, v{awr[o>>16]} offset:{o & 0xffff}")
    def rd_x(k): A(f"ds_read_b128 {v(X+4*(k%2),4)}, v{axr[k%4]} offset:{(k//4)*8192}")
    rd_x(0)
    for g in range(3): rd_w(0, g)
    tags = [i // 6 for i in range(npre)]
    pend = [((npre + i) // 6, l) for i, l in enumerate(pend)]
    def emit(n):
        for _ in range(n):
            if pend:
                tag, l = pend.pop(0)
                for x_ in l: A(x_)
                tags.append(tag)
    def wait_stage(j):
        idx = max(i for i, t in enumerate(tags) if t == j)
        assert sum(1 for t in tags if t == j) == 6
        return len(tags) - 1 - idx
    for k in range(32):
        j, s_ = k // 4, k % 4
        b = k % 2
        last = k == 31
        c_ = (lambda g: "0" if k == 0 else v(acc[g], 16))
        if k == 16: stamp(A, 10)
        if s_ == 3 and not last:
            A(f"s_waitcnt vmcnt({wait_stage(j+1)}) lgkmcnt(0)")
            A("s_barrier")
            if j < 4: pend += [(4 + j, l) for l in dma_stage(4 + j)]
            if j == 3 and CODEPF:
                pend.append((9, ["s_getpc_b64 s[44:45]", f"{name}_pc0:", f"s_add_u32 s44, s44, k2_main_kernel-{name}_pc0", "s_addc_u32 s45, s45, 0",
                                 "s_mov_b32 s46, k2_main_kernel_end-k2_main_kernel", "s_mov_b32 s47, 0x00020000",
                                 "s_lshl_b32 s18, s11, 2", "s_add_u32 s18, s18, s14", "s_lshl_b32 s18, s18, 9",
                                 f"v_lshlrev_b32 v{vt}, 7, v{lane}", "s_mov_b64 exec, 15",
                                 f"buffer_load_dword v{dummy}, v{vt}, s[44:47], s18 offen", "s_mov_b64 exec, -1"]))
        else:
            A("s_waitcnt lgkmcnt(4)")
        A(f"v_mfma_f32_32x32x16_bf16 {v(acc[0],16)}, {v(wf[b][0],4)}, {v(X+4*b,4)}, {c_(0)}")
        if not last: rd_x(k + 1); rd_w(k + 1, 0)
        A(f"s_waitcnt lgkmcnt({2 if last else 5})")
        A(f"v_mfma_f32_32x32x16_bf16 {v(acc[1],16)}, {v(wf[b][1],4)}, {v(X+4*b,4)}, {c_(1)}")
        if not last: rd_w(k + 1, 1)
        emit(1)
        A(f"s_waitcnt lgkmcnt({0 if last else 5})")
        A(f"v_mfma_f32_32x32x16_bf16 {v(acc[2],16)}, {v(X+4*b,4)}, {v(wf[b][2],4)}, {c_(2)}")
        if not last: rd_w(k + 1, 2)
        emit(1)
    assert not pend
    stamp(A, 11)
    srd(A, 20, 8, WS_SIZE)
    a0, a1, a2 = axr[0], axr[1], axr[2]
    stp = tp[0]
    A(f"v_mov_b32 v{stp}, -1")
    A(f"v_mov_b32 v{stp+1}, -1")
    A(f"v_lshlrev_b32 v{a1}, 3, v0")
    A("s_lshl_b32 s18, s2, 11")
    A(f"s_add_u32 s18, s18, {hex(WS_SY)}")
    A(f"buffer_store_dwordx2 {v(stp,2)}, v{a1}, s[20:23], s18 offen")
    A("s_lshl_b32 s18, s12, 1")
    A("s_add_u32 s18, s18, s15")
    A("s_lshl_b32 s19, s13, 2")
    A("s_lshl_b32 s28, s16, 1")
    A("s_add_u32 s19, s19, s28")
    A("s_lshl_b32 s28, s19, 6")
    A("s_add_u32 s28, s28, s18")
    A("s_lshl_b32 s28, s28, 10")
    A(f"v_lshlrev_b32 v{a0}, 4, v{lane}")
    A(f"v_add_u32 v{a0}, s28, v{a0}")
    A(f"v_lshrrev_b32 v{a2}, 4, v{ii}")
    A(f"v_lshlrev_b32 v{a2}, 16, v{a2}")
    A(f"v_lshl_add_u32 v{a2}, v{hh}, 8, v{a2}")
    A(f"v_lshl_add_u32 v{a2}, v{l16}, 4, v{a2}")
    A(f"v_add_u32 v{a2}, s28, v{a2}")
    A(f"s_mov_b32 s34, {f32(0.25*LOG2E)}")
    A(f"s_mov_b32 s35, {f32(0.25*LOG2E)}")
    pk = [X + 8, X + 16, X + 24]
    for g in range(3):
        if g == 0:
            for p_ in range(8): A(f"v_pk_mul_f32 {v(acc[0]+2*p_,2)}, {v(acc[0]+2*p_,2)}, s[34:35]")
        for p_ in range(8): A(f"v_cvt_pk_bf16_f32 v{pk[g]+p_}, v{acc[g]+2*p_}, v{acc[g]+2*p_+1}")
        A(f"s_mov_b32 s30, {hex((WS_QF, WS_KF, WS_VF)[g])}")
        if g < 2:
            A(f"s_add_u32 s29, s30, 0x10000")
            A(f"buffer_store_dwordx4 {v(pk[g],4)}, v{a0}, s[20:23], s30 offen")
            A(f"buffer_store_dwordx4 {v(pk[g]+4,4)}, v{a0}, s[20:23], s29 offen")
        else:
            A(f"buffer_store_dwordx4 {v(pk[2],4)}, v{a2}, s[20:23], s30 offen")
            A(f"buffer_store_dwordx4 {v(pk[2]+4,4)}, v{a2}, s[20:23], s30 offen offset:512")
    A(f"v_mov_b32 v{t0}, 0")
    A(f"v_mov_b32 v{t1}, 0")
    for q in range(4):
        A(f"v_dot2_f32_bf16 v{t0}, v{pk[1]+q}, v{pk[1]+q}, v{t0}")
        A(f"v_dot2_f32_bf16 v{t1}, v{pk[1]+4+q}, v{pk[1]+4+q}, v{t1}")
    A(f"v_permlane32_swap_b32 v{t0}, v{t1}")
    A(f"v_add_f32 v{t0}, v{t0}, v{t1}")
    for sh in (8, 4, 2, 1):
        A(f"v_max_f32_dpp v{t0}, v{t0}, v{t0} row_ror:{sh} row_mask:0xf bank_mask:0xf")
    A("s_lshl_b32 s28, s19, 9")
    A("s_lshl_b32 s29, s18, 3")
    A("s_add_u32 s28, s28, s29")
    A(f"v_lshrrev_b32 v{a1}, 4, v{ii}")
    A(f"v_lshlrev_b32 v{a1}, 2, v{a1}")
    A(f"v_lshl_add_u32 v{a1}, v{hh}, 9, v{a1}")
    A(f"v_add_u32 v{a1}, s28, v{a1}")
    A(f"s_mov_b32 s30, {hex(WS_KN)}")
    A("s_mov_b32 exec_lo, 0x00010001")
    A("s_mov_b32 exec_hi, 0x00010001")
    A(f"buffer_store_dword v{t0}, v{a1}, s[20:23], s30 offen")
    stamp_flush(A, name, 0, 12)
    A.label(f"{name}_end")
    A("s_endpgm")
    return A.finish() + kernel_desc(name, V.hi), (name, 256, 256, 163840)
```

```python
from common import *
import math
GA = 2 * math.sqrt(2 / math.pi) * LOG2E
GB = GA * 0.044715
THRESH = 40.0
WNT = os.environ.get('WNT', 'nt')
SIDE_STEP = float(os.environ.get('SSTEP', '3.6'))

LANE, T0, T1, T2, T3, T4, T5, VL16, HH, II, L16, GG = 1, 2, 3, 4, 5, 6, 7, 8, 9, 10, 11, 12
RB, CB, WV, TH, KH, TL32, TL16 = 10, 11, 14, 15, 16, 19, 43
CHS = 16384
L_WO = 64 * 1024
L_XB = 132 * 1024
L_RED = 56 * 1024

def poll(A, name, tag, loads, cond_regs):
    A(f"s_mov_b32 s40, {SPIN_MAX}")
    A.label(f"{name}_poll{tag}")
    for l in loads: A(l)
    A("s_waitcnt vmcnt(0)")
    acc = cond_regs[0]
    if len(cond_regs) > 1:
        A(f"v_max_u32 v{T0}, v{cond_regs[0]}, v{cond_regs[1]}")
        for c in cond_regs[2:]: A(f"v_max_u32 v{T0}, v{T0}, v{c}")
        acc = T0
    A(f"v_cmp_eq_u32 vcc, -1, v{acc}")
    A("s_sub_u32 s40, s40, 1")
    A(f"s_cbranch_scc1 {name}_done{tag}")
    A(f"s_cbranch_vccnz {name}_poll{tag}")
    A.label(f"{name}_done{tag}")

def red_g(A, regs):
    for x in regs:
        A(f"v_mov_b32 v{T0}, v{x}")
        A(f"v_permlane32_swap_b32 v{x}, v{T0}")
        A(f"v_add_f32 v{x}, v{x}, v{T0}")
        A(f"v_mov_b32 v{T0}, v{x}")
        A(f"v_permlane16_swap_b32 v{x}, v{T0}")
        A(f"v_add_f32 v{x}, v{x}, v{T0}")

def ln_from_sums(A, sm, sq, n, nmu, rs):
    A(f"v_mul_f32 v{nmu}, {f32(-1.0/n)}, v{sm}")
    A(f"v_mul_f32 v{sq}, {f32(1.0/n)}, v{sq}")
    A(f"v_fma_f32 v{sq}, -v{nmu}, v{nmu}, v{sq}")
    A(f"v_max_f32 v{sq}, 0, v{sq}")
    A(f"v_add_f32 v{sq}, {f32(1e-5)}, v{sq}")
    A(f"v_rsq_f32 v{rs}, v{sq}")

def flag(A, sreg, wait):
    A(f"v_mov_b32 v{T0}, 0")
    A(f"v_mov_b32 v{T1}, 1")
    A("s_mov_b64 exec, 1")
    A(f"s_waitcnt vmcnt({wait})")
    A(f"buffer_store_dword v{T1}, v{T0}, s[20:23], s{sreg} offen sc1")
    A("s_mov_b64 exec, -1")

class Stream:
    def __init__(self, A): self.A = A; self.q = []; self.n = 0
    def add(self, *lines): self.q.append(lines)
    def emit(self, k=1):
        for _ in range(k):
            if self.q:
                for l in self.q.pop(0): self.A(l)
                self.n += 1
    def flush(self): self.emit(len(self.q))

def gen_k2f(name="k2_main_kernel"):
    A = Asm()
    kernel_head(A, name)
    A("s_cmp_ge_u32 s2, 256")
    A(f"s_cbranch_scc1 {name}_end")
    stamp(A, 0)
    A(f"s_load_dwordx2 s[8:9], s[0:1], {KA_WS}")
    A(f"s_load_dwordx2 s[4:5], s[0:1], {KA_X}")
    A(f"s_load_dwordx2 s[6:7], s[0:1], {KA_WO}")
    A(f"s_load_dwordx8 s[44:51], s[0:1], {KA_WIN}")
    A(f"s_load_dwordx2 s[52:53], s[0:1], {KA_OUT}")
    A("s_and_b32 s12, s2, 7")
    A("s_lshr_b32 s13, s2, 3")
    A(f"s_lshr_b32 s{RB}, s12, 1")
    A(f"s_lshl_b32 s{RB}, s{RB}, 3")
    A("s_and_b32 s17, s13, 7")
    A("s_mov_b32 s55, s17")
    A(f"s_add_u32 s{RB}, s{RB}, s17")
    A(f"s_and_b32 s{CB}, s12, 1")
    A(f"s_lshl_b32 s{CB}, s{CB}, 2")
    A("s_lshr_b32 s17, s13, 3")
    A(f"s_add_u32 s{CB}, s{CB}, s17")
    A("s_lshl_b32 s31, s17, 8")
    HEAD, QB = 12, 13
    A("s_lshl_b32 s12, s12, 2")
    A("s_and_b32 s17, s13, 3")
    A("s_add_u32 s12, s12, s17")
    A("s_lshr_b32 s13, s2, 5")
    A(f"v_and_b32 v{LANE}, 63, v0")
    A(f"v_lshrrev_b32 v{T0}, 6, v0")
    A(f"v_readfirstlane_b32 s{WV}, v{T0}")
    A(f"s_lshr_b32 s{TH}, s{WV}, 1")
    A(f"s_and_b32 s{KH}, s{WV}, 1")
    A(f"v_lshlrev_b32 v{VL16}, 4, v{LANE}")
    A(f"v_lshrrev_b32 v{HH}, 5, v{LANE}")
    A(f"v_and_b32 v{II}, 31, v{LANE}")
    A(f"v_and_b32 v{L16}, 15, v{LANE}")
    A(f"v_lshrrev_b32 v{GG}, 4, v{LANE}")
    VV, VD = 13, 14
    kn, mm = 20, [22, 23, 112, 113]
    Q = [24 + 4*i for i in range(4)]
    KF = [40 + 4*i for i in range(4)] + [256 + 192 + 4*i for i in range(4)]
    V0 = [56 + 4*i for i in range(4)] + [256 + 208 + 4*i for i in range(4)]
    V1 = [72 + 4*i for i in range(4)] + [256 + 224 + 4*i for i in range(4)]
    P0, P1 = 88, 92
    SB = [96, 112]
    O = [128 + 16*i for i in range(4)]
    NM = [192 + 16*i for i in range(4)]
    A(f"v_lshlrev_b32 v{T1}, 4, v{L16}")
    A(f"v_lshl_add_u32 v{VV}, v{HH}, 8, v{T1}")
    A(f"v_add_u32 v{VV}, {hex(WS_VF - WS_KF)}, v{VV}")
    A(f"s_lshl_b32 s17, s{QB}, 3")
    A(f"s_lshl_b32 s28, s{TH}, 2")
    A("s_add_u32 s17, s17, s28")
    A(f"s_lshl_b32 s18, s{HEAD}, 16")
    A("s_lshl_b32 s34, s17, 10")
    A("s_add_u32 s34, s34, s18")
    A(f"s_lshl_b32 s28, s{KH}, 11")
    A(f"v_xor_b32 v{T2}, s28, v{VL16}")
    A(f"v_xor_b32 v{T1}, 0x800, v{T2}")
    A(f"s_lshl_b32 s29, s{KH}, 15")
    A("s_add_u32 s29, s29, s18")
    A(f"s_add_u32 s29, s29, {hex(WS_KF)}")
    A(f"s_lshl_b32 s30, s{HEAD}, 9")
    A(f"s_add_u32 s30, s30, {hex(WS_KN)}")
    A(f"v_lshlrev_b32 v{T0}, 3, v{LANE}")
    A("s_mov_b32 s32, 0x0000ffff")
    A("s_mov_b32 s33, 0x0000ffff")
    A(f"v_and_b32 v{T3}, 27, v{LANE}")
    A(f"v_cmp_eq_u32 vcc, 16, v{T3}")
    A(f"v_mov_b32 v{T4}, 0x3f803f80")
    A(f"v_cndmask_b32 v{T3}, 0, v{T4}, vcc")
    for q in range(32): A(f"v_mov_b32 v{V0[0]+q}, v{T3}")
    for q in range(32): A(f"v_accvgpr_write_b32 a{208+q}, v{T3}")
    A("s_waitcnt lgkmcnt(0)")
    srd(A, 20, 8, WS_SIZE)
    A(f"buffer_load_dwordx4 {v(Q[0],4)}, v{T2}, s[20:23], s34 offen")
    A(f"buffer_load_dwordx4 {v(Q[1],4)}, v{T2}, s[20:23], s34 offen offset:1024")
    A(f"buffer_load_dwordx4 {v(Q[2],4)}, v{T1}, s[20:23], s34 offen")
    A(f"buffer_load_dwordx4 {v(Q[3],4)}, v{T1}, s[20:23], s34 offen offset:1024")
    A(f"buffer_load_dwordx2 {v(kn,2)}, v{T0}, s[20:23], s30 offen")
    def load_kv(slot, off):
        A(f"buffer_load_dwordx4 {r(KF[slot],4)}, v{VL16}, s[20:23], s29 offen offset:{off}")
        A("s_mov_b64 exec, s[32:33]")
        A(f"buffer_load_dwordx4 {r(V0[slot],4)}, v{VV}, s[20:23], s29 offen offset:{off}")
        A(f"buffer_load_dwordx4 {r(V1[slot],4)}, v{VV}, s[20:23], s29 offen offset:{off+512}")
        A("s_mov_b64 exec, -1")
    for s_ in range(3): load_kv(s_, s_*1024)
    A("s_add_u32 s29, s29, 3072")
    srd(A, 24, 46, S * S * 2)
    for i in range(4):
        A(f"v_add_u32 v{T0}, {4*i}, v{GG}")
        A(f"v_xor_b32 v{T0}, v{T0}, v{L16}")
        A(f"v_lshlrev_b32 v{T0}, 4, v{T0}")
        A(f"v_lshl_add_u32 v{T0}, v{GG}, 12, v{T0}")
        A(f"v_add_u32 v{VD+i}, {i*(16384-1024)}, v{T0}")
    A(f"s_lshl_b32 s38, s{RB}, 18")
    A(f"s_lshl_b32 s28, s{WV}, 10")
    A("s_add_u32 s38, s38, s28")
    A(f"s_lshl_b32 s28, s{WV}, 16")
    A("s_add_u32 s38, s38, s28")
    A("s_add_u32 s38, s38, s31")
    A(f"s_lshl_b32 s39, s{WV}, 14")
    VDW = 19
    A(f"v_lshrrev_b32 v{T0}, 3, v{LANE}")
    A(f"v_lshlrev_b32 v{T0}, 10, v{T0}")
    A(f"v_and_b32 v{T1}, 1, v{GG}")
    A(f"v_lshlrev_b32 v{T1}, 2, v{T1}")
    A(f"v_xor_b32 v{T1}, v{T1}, v{LANE}")
    A(f"v_and_b32 v{T1}, 7, v{T1}")
    A(f"v_lshl_add_u32 v{T0}, v{T1}, 4, v{T0}")
    A(f"s_lshl_b32 s28, s{CB}, 7")
    A(f"s_lshl_b32 s30, s{WV}, 17")
    A("s_add_u32 s28, s28, s30")
    A(f"v_add_u32 v{VDW}, s28, v{T0}")
    srd(A, 56, 6, D * D * 2)
    A(f"s_lshl_b32 s42, s{WV}, 14")
    A(f"s_add_u32 s42, s42, {L_WO}")
    A("s_lshl_b32 s41, s55, 1")
    NPRE = 12
    for t in range(4):
        load_kv(3 + t, t*1024)
    A("s_add_u32 s29, s29, 4096")
    for t in range(4): A(f"v_mov_b32 v{mm[t]}, 0")
    A(f"s_waitcnt vmcnt({9+NPRE})")
    A(f"v_max_f32 v{kn}, v{kn}, v{kn+1}")
    for sh in (8, 4, 2, 1):
        A(f"v_max_f32_dpp v{kn}, v{kn}, v{kn} row_ror:{sh} row_mask:0xf bank_mask:0xf")
    for q in range(4):
        for t in range(4):
            A(f"v_dot2_f32_bf16 v{mm[t]}, v{Q[t]+q}, v{Q[t]+q}, v{mm[t]}")
    A(f"v_readlane_b32 s34, v{kn}, 0")
    A(f"v_readlane_b32 s35, v{kn}, 16")
    A(f"v_readlane_b32 s40, v{kn}, 32")
    A(f"v_readlane_b32 s37, v{kn}, 48")
    A("s_max_u32 s34, s34, s35")
    A("s_max_u32 s40, s40, s37")
    A("s_max_u32 s34, s34, s40")
    for t in range(4):
        A(f"v_mov_b32 v{T0}, v{mm[t]}")
        A(f"v_permlane32_swap_b32 v{mm[t]}, v{T0}")
        A(f"v_add_f32 v{mm[t]}, v{mm[t]}, v{T0}")
        A(f"v_mul_f32 v{mm[t]}, s34, v{mm[t]}")
        A(f"v_sqrt_f32 v{mm[t]}, v{mm[t]}")
    A(f"v_max3_f32 v{T0}, v{mm[0]}, v{mm[1]}, v{mm[2]}")
    A(f"v_max_f32 v{T0}, v{T0}, v{mm[3]}")
    A(f"v_add_f32 v{T1}, v{mm[0]}, v{mm[1]}")
    A(f"v_add_f32 v{T2}, v{mm[2]}, v{mm[3]}")
    A(f"v_add_f32 v{T1}, v{T1}, v{T2}")
    A(f"v_mov_b32 v{T2}, {f32(THRESH)}")
    A(f"v_cmp_nle_f32 vcc, v{T0}, v{T2}")
    A(f"v_cmp_u_f32 s[34:35], v{T1}, v{T1}")
    A("s_or_b64 vcc, vcc, s[34:35]")
    A(f"s_cbranch_vccnz {name}_slow")
    A.label(f"{name}_fast")
    for t in range(4):
        for q in range(16): A(f"v_sub_f32 v{NM[t]+q}, 0, v{mm[t]}")
    VRS = 20
    A(f"v_xor_b32 v{T0}, v{GG}, v{L16}")
    A(f"v_lshlrev_b32 v{T0}, 4, v{T0}")
    A(f"v_lshl_add_u32 v{T0}, v{L16}, 8, v{T0}")
    A(f"v_add_u32 v{VRS}, s39, v{T0}")
    for k_ in range(1, 4): A(f"v_xor_b32 v{VRS+k_}, {64*k_}, v{VRS}")
    A("s_waitcnt vmcnt(18)")
    A(f"v_mfma_f32_32x32x16_bf16 {v(SB[0],16)}, {v(KF[0],4)}, {v(Q[0],4)}, {v(NM[0],16)}")
    A("s_lshr_b32 s35, s2, 3")
    A("s_lshl_b32 s35, s35, 2")
    A(f"s_add_u32 s35, s35, s{WV}")
    stamp(A, 1)
    A("s_nop 7")
    side = {}
    def put(slot, kind, lines, tag=None):
        while slot in side: slot += 1
        side[slot] = (kind, lines, tag)
        return slot
    STEP = SIDE_STEP
    for n in range(16):
        c_, gq = n // 4, n % 4
        for i in range(4):
            l = []
            if i == 0:
                if gq == 0: l.append(f"s_xor_b32 s36, s38, {c_ << 8}")
                l.append(f"s_xor_b32 s37, s36, {gq*65536}")
            l.append(f"s_add_u32 m0, s39, {gq*4096}" if True else "")
            l.append("s_nop 0" if i else "s_nop 0")
            l.append(f"buffer_load_dwordx4 v{VD+i}, s[24:27], s37 offen offset:{i*1024} {WNT} lds")
            put(2 + int((4*n + i) * STEP), "vm", l, ("wsp", n))
    for n in range(12):
        c_, gq = n // 4, n % 4
        for ksl in range(4):
            put(2 + int((4*(n+4) - 5 + ksl) * STEP) - 1, "rd",
                [f"ds_read_b128 {a((4*c_+ksl)*16+4*gq,4)}, v{VRS+ksl} offset:{gq*4096}"], ("wsp", n))
    for i in range(16):
        put(70 + 11*i, "vm", [f"s_xor_b32 s28, s41, {i}", "s_lshl_b32 s30, s28, 10", "s_add_u32 m0, s42, s30", "s_lshl_b32 s28, s28, 13",
                              f"buffer_load_dwordx4 v{VDW}, s[56:59], s28 offen lds"], ("wo", i))
    def touch(slot, pre, lanes, soffs):
        for k_, so in enumerate(soffs):
            put(slot + 14*k_, "vm", (pre if k_ == 0 else []) + [so, f"s_mov_b64 exec, {lanes}",
                f"buffer_load_dword v{T5}, v{T4}, s[88:91], s40 offen", "s_mov_b64 exec, -1"])
    srdl = lambda base, nb: [f"s_mov_b32 s88, s{base}", f"s_mov_b32 s89, s{base+1}", f"s_mov_b32 s90, {hex(nb)}", "s_mov_b32 s91, 0x00020000"]
    touch(90, srdl(44, D*2*FH*2) + [f"s_mul_i32 s54, s35, {4*3584}", "s_and_b32 s34, s2, 1", "s_mul_i32 s34, s34, 896", "s_add_u32 s54, s54, s34",
          f"v_lshrrev_b32 v{T4}, 3, v{LANE}", f"v_mul_u32_u24 v{T4}, 1792, v{T4}", f"v_and_b32 v{T3}, 7, v{LANE}", f"v_lshl_add_u32 v{T4}, v{T3}, 7, v{T4}"],
          "0x7f7f", [f"s_add_u32 s40, s54, {k_*3584}" for k_ in range(4)])
    touch(160, srdl(50, FH*D*2) + ["s_mul_i32 s54, s35, 7168", "s_and_b32 s34, s2, 1", "s_lshl_b32 s34, s34, 9", "s_add_u32 s54, s54, s34",
          f"v_lshrrev_b32 v{T4}, 2, v{LANE}", f"v_and_b32 v{T3}, 3, v{LANE}", f"v_lshlrev_b32 v{T3}, 7, v{T3}", f"v_lshl_add_u32 v{T4}, v{T4}, 10, v{T3}"],
          "0xffff", [f"s_add_u32 s40, s54, {k_*3072}" for k_ in range(2)])
    vm = [("kv", t_) for t_ in range(7) for _ in range(3)]
    def younger(tag):
        idx = max(i for i, x in enumerate(vm) if x == tag)
        return len(vm) - 1 - idx
    state = {"m0": None, "rdwait": set(), "rd_out": False}
    def do_side(slot):
        if slot not in side: return
        kind, lines, tag = side.pop(slot)
        if kind == "rd":
            if tag not in state["rdwait"]:
                assert sum(1 for x in vm if x == tag) == 4
                n = younger(tag)
                assert n <= 63
                if n < state.get("lastwait", (0, 99))[1] + len(vm) - state.get("lastwait", (0, 99))[0]:
                    A(f"s_waitcnt vmcnt({n})")
                state["rdwait"].add(tag)
            state.setdefault("nrd", {})[tag] = state.setdefault("nrd", {}).get(tag, 0) + 1
        if kind == "vm" and tag and tag[0] == "wsp":
            if tag[1] >= 4 and tag not in state["rdwait2"]:
                assert state["nrd"][("wsp", tag[1] - 4)] == 4
                A("s_waitcnt lgkmcnt(0)")
                state["rdwait2"].add(tag)
            m0l = [l for l in lines if "m0" in l][0]
            if state["m0"] == m0l: lines = [l for l in lines if l != m0l and l != "s_nop 0"]
            else:
                lines = [l for l in lines if l != "s_nop 0"]
                lines = [m0l] + [l for l in lines if l != m0l]
            state["m0"] = m0l
        elif any("m0" in l for l in lines): state["m0"] = None
        for l in lines: A(l)
        if kind == "vm": vm.append(tag)
    state["rdwait2"] = set()
    for tile in range(32):
        kt = tile % 8
        for t in range(4):
            u = tile * 4 + t
            S_, Sn = SB[u % 2], SB[(u + 1) % 2]
            nkt, nt = (kt + (t + 1) // 4) % 8, (t + 1) % 4
            pkt, pt = (kt - (1 if t == 0 else 0)) % 8, (t - 1) % 4
            e = lambda i: A(f"v_exp_f32 v{S_+i}, v{S_+i}")
            c = lambda i: A(f"v_cvt_pk_bf16_f32 v{(P0 if i < 8 else P1) + (i % 8)//2}, v{S_+i}, v{S_+i+1}")
            if t == 3 and tile < 31:
                n = younger(("kv", tile + 1))
                A(f"s_waitcnt vmcnt({n})")
                state["lastwait"] = (len(vm), n)
            if u < 127: A(f"v_mfma_f32_32x32x16_bf16 {v(Sn,16)}, {r(KF[nkt],4)}, {v(Q[nt],4)}, {v(NM[nt],16)}")
            e(0); e(1); e(2)
            if u > 0:
                c_o = "0" if False else v(O[pt],16)
                A(f"v_mfma_f32_32x32x16_bf16 {v(O[pt],16)}, {r(V1[pkt],4)}, {v(P1,4)}, {c_o}")
            c(0); e(3); e(4); do_side(2*u); c(2); e(5); e(6); c(4)
            if t == 1 and tile + 7 < 32:
                load_kv((kt - 1) % 8, (tile % 4)*1024); vm += [("kv", tile + 7)] * 3
                if tile % 4 == 3: A("s_add_u32 s29, s29, 4096")
            e(7); e(8); c(6); e(9); e(10)
            A(f"v_mfma_f32_32x32x16_bf16 {v(O[t],16)}, {r(V0[kt],4)}, {v(P0,4)}, {'0' if tile == 0 else v(O[t],16)}")
            c(8); e(11); e(12); do_side(2*u+1); c(10); e(13); e(14); e(15)
            c(12); c(14)
    assert not side, sorted(side)
    def read_chunk3():
        for gq in range(4):
            for ksl in range(4):
                A(f"ds_read_b128 {a((12+ksl)*16+4*gq,4)}, v{VRS+ksl} offset:{gq*4096}")
    A.label(f"{name}_tail")
    A(f"v_mfma_f32_32x32x16_bf16 {v(O[3],16)}, {r(V1[7],4)}, {v(P1,4)}, {v(O[3],16)}")
    stamp(A, 2)
    VXW, VXR = 13, 14
    A(f"s_mul_i32 s34, s{WV}, 7168")
    A(f"s_add_u32 s34, s34, {L_XB}")
    A(f"s_xor_b32 s35, s{WV}, 1")
    A("s_mul_i32 s35, s35, 7168")
    A(f"s_add_u32 s35, s35, {L_XB}")
    A(f"v_add_u32 v{VXW}, s34, v{VL16}")
    A(f"v_add_u32 v{VXR}, s35, v{VL16}")
    A(f"v_mov_b32 v{O[2]+9}, v{O[3]+8}")
    for t in (2, 3):
        A(f"ds_write_b128 v{VXW}, {v(O[t],4)} offset:{(t-2)*2048}")
        A(f"ds_write_b128 v{VXW}, {v(O[t]+4,4)} offset:{(t-2)*2048+1024}")
    A(f"ds_write_b64 v{VXW}, {v(O[2]+8,2)} offset:4096")
    A("s_waitcnt vmcnt(0) lgkmcnt(0)")
    A("s_barrier")
    A(f"ds_read_b64 {v(T4,2)}, v{VXR} offset:4096")
    for t in (0, 1):
        A(f"ds_read_b128 {v(SB[t],4)}, v{VXR} offset:{t*2048}")
        A(f"ds_read_b128 {v(SB[t]+4,4)}, v{VXR} offset:{t*2048+1024}")
    A(f"s_lshl_b32 s34, s{KH}, 1")
    A("s_add_u32 s34, s34, s17")
    A("s_lshl_b32 s36, s34, 6")
    A("s_lshl_b32 s34, s34, 5")
    A(f"s_add_u32 s34, s34, s{HEAD}")
    A("s_lshl_b32 s34, s34, 10")
    A(f"s_add_u32 s34, s34, {hex(WS_OF)}")
    A("s_add_u32 s35, s34, 0x8000")
    A(f"s_lshl_b32 s37, s{HEAD}, 2")
    A("s_add_u32 s36, s36, s37")
    A(f"s_add_u32 s36, s36, {hex(WS_FO)}")
    A("s_waitcnt lgkmcnt(4)")
    for t in (0, 1):
        A(f"v_add_f32 v{T4+t}, v{O[t]+8}, v{T4+t}")
        A(f"v_rcp_f32 v{T4+t}, v{T4+t}")
    for t in (0, 1):
        A(f"s_waitcnt lgkmcnt({2 - 2*t})")
        for q in range(4): A(f"v_pk_add_f32 {v(O[t]+2*q,2)}, {v(O[t]+2*q,2)}, {v(SB[t]+2*q,2)}")
        for q in range(4): A(f"v_pk_mul_f32 {v(O[t]+2*q,2)}, {v(O[t]+2*q,2)}, {v(T4,2)} op_sel:[0,{t}] op_sel_hi:[1,{t}]")
        pk = P0 if t == 0 else P1
        for q in range(4): A(f"v_cvt_pk_bf16_f32 v{pk+q}, v{O[t]+2*q}, v{O[t]+2*q+1}")
        A(f"buffer_store_dwordx4 {v(pk,4)}, v{VL16}, s[20:23], s{34+t} offen sc1")
    read_chunk3()
    VT0, VXO, VWI, XR = 15, 16, 17, 24
    OFR, ACC, WOF = 32, 96, 128
    A(f"s_lshl_b32 s{TL32}, s{RB}, 1")
    A(f"s_add_u32 s{TL32}, s{TL32}, s{TH}")
    A(f"s_lshl_b32 s{TL16}, s{RB}, 2")
    A(f"s_add_u32 s{TL16}, s{TL16}, s{WV}")
    A(f"v_lshrrev_b32 v{T0}, 2, v{L16}")
    A(f"v_lshl_add_u32 v{T0}, v{HH}, 2, v{T0}")
    A(f"v_lshlrev_b32 v{T0}, 7, v{T0}")
    A(f"v_and_b32 v{T1}, 1, v{GG}")
    A(f"v_lshl_add_u32 v{T0}, v{T1}, 5, v{T0}")
    A(f"v_and_b32 v{T1}, 3, v{LANE}")
    A(f"v_lshl_add_u32 v{T0}, v{T1}, 3, v{T0}")
    A(f"v_lshrrev_b32 v{T1}, 3, v{L16}")
    A(f"v_xor_b32 v{T1}, s{KH}, v{T1}")
    A(f"v_lshl_add_u32 v{VT0}, v{T1}, 6, v{T0}")
    A(f"s_lshl_b32 s17, s{KH}, 15")
    A(f"s_add_u32 s17, s17, {L_WO}")
    A(f"v_add_u32 v{T2}, s17, v{VT0}")
    A(f"v_xor_b32 v{T3}, 64, v{T2}")
    def rd_wo(ks):
        for p in range(2):
            for a_ in range(2):
                A(f"ds_read_b64_tr_b16 {v(WOF+8*ks+4*p+2*a_,2)}, v{(T2,T3)[p]} offset:{ks*2048+a_*1024}")
    for ks in range(8): rd_wo(ks)
    flag(A, 36, 0)
    for ks in range(8, 16): rd_wo(ks)
    A(f"s_lshl_b32 s17, s{TL32}, 15")
    A(f"s_lshl_b32 s28, s{CB}, 7")
    A("s_add_u32 s17, s17, s28")
    A(f"s_lshl_b32 s28, s{KH}, 6")
    A("s_add_u32 s17, s17, s28")
    A(f"v_lshlrev_b32 v{T0}, 10, v{II}")
    A(f"v_add_u32 v{VXO}, s17, v{T0}")
    A(f"v_lshl_add_u32 v{T0}, v{HH}, 3, v{VXO}")
    srd(A, 24, 4, S * D * 2)
    for q in range(4):
        A(f"buffer_load_dwordx2 {v(XR+2*q,2)}, v{T0}, s[24:27], 0 offen offset:{q*16}")
    for m in range(7):
        A(f"v_add_u32 v{T0}, {64*m}, v{LANE}")
        A(f"v_mul_u32_u24 v{T1}, 4682, v{T0}")
        A(f"v_lshrrev_b32 v{T1}, 16, v{T1}")
        A(f"v_mul_u32_u24 v{T4}, 14, v{T1}")
        A(f"v_sub_u32 v{T0}, v{T0}, v{T4}")
        A(f"v_mul_u32_u24 v{T1}, 3584, v{T1}")
        A(f"v_lshl_add_u32 v{VWI+m}, v{T0}, 4, v{T1}")
    srd(A, 56, 44, D * 2 * FH * 2)
    A(f"s_mul_i32 s41, s{WV}, {128*3584}")
    A(f"s_mul_i32 s17, s{CB}, 224")
    A("s_add_u32 s41, s41, s17")
    A(f"s_mul_i32 s42, s{WV}, 7168")
    def win_stream(half, grps):
        st = Stream(A)
        for grp in grps:
            for m in range(7):
                l = [f"s_add_u32 m0, s42, {grp*28672 + m*1024}"]
                l.append(f"s_add_u32 s30, s41, {grp*32*3584 + half*1792}" if m == 0 else "s_nop 0")
                l.append(f"buffer_load_dwordx4 v{VWI+m}, s[56:59], s30 offen lds")
                st.add(*l)
        return st
    A("s_waitcnt lgkmcnt(0)")
    A("s_barrier")
    win_stream(1, (0, 1)).flush()
    A(f"s_lshl_b32 s17, s{RB}, 7")
    A(f"s_lshl_b32 s28, s{KH}, 6")
    A("s_add_u32 s17, s17, s28")
    A(f"s_add_u32 s17, s17, {hex(WS_FO)}")
    A(f"v_lshlrev_b32 v{T1}, 2, v{L16}")
    A(f"s_lshl_b32 s34, s{TL32}, 15")
    A(f"s_lshl_b32 s28, s{KH}, 14")
    A("s_add_u32 s34, s34, s28")
    A(f"s_add_u32 s34, s34, {hex(WS_OF)}")
    poll(A, name, "O", [f"buffer_load_dword v{T2}, v{T1}, s[20:23], s17 offen sc1"], [T2])
    stamp(A, 3)
    LA = 10
    def ld_o(ks):
        if ks >= 16: return False
        if ks % 4 == 0 and ks: A("s_add_u32 s34, s34, 4096")
        A(f"buffer_load_dwordx4 {v(OFR+4*ks,4)}, v{VL16}, s[20:23], s34 offen offset:{(ks%4)*1024} sc1")
        return True
    for ks in range(LA): ld_o(ks)
    st = win_stream(1, (2, 3))
    for ks in range(16):
        A(f"s_waitcnt vmcnt({min(16, ks + LA) - ks - 1 + st.n})")
        for p in range(2):
            c_ = "0" if ks == 0 else v(ACC+16*p,16)
            A(f"v_mfma_f32_32x32x16_bf16 {v(ACC+16*p,16)}, {v(WOF+8*ks+4*p,4)}, {v(OFR+4*ks,4)}, {c_}")
        if not ld_o(ks + LA) and ks >= 8: st.emit(1)
    def exchange(src, dst, n4):
        for q in range(n4): A(f"ds_write_b128 v{VXW}, {v(src+4*q,4)} offset:{q*1024}")
        A("s_waitcnt lgkmcnt(0)")
        A("s_barrier")
        for q in range(n4): A(f"ds_read_b128 {v(dst+4*q,4)}, v{VXR} offset:{q*1024}")
    RCV = OFR
    HP = 248
    exchange(ACC + 16, RCV, 4)
    for q in range(8):
        A(f"v_lshlrev_b32 v{T0}, 16, v{XR+q}")
        A(f"v_and_b32 v{T1}, 0xffff0000, v{XR+q}")
        A(f"v_add_f32 v{ACC+2*q}, v{ACC+2*q}, v{T0}")
        A(f"v_add_f32 v{ACC+2*q+1}, v{ACC+2*q+1}, v{T1}")
    A(f"v_and_b32 v{T0}, 1, v{GG}")
    A(f"v_lshlrev_b32 v{T0}, 14, v{T0}")
    A(f"v_lshl_add_u32 v{T0}, v{HH}, 8, v{T0}")
    A(f"v_lshl_add_u32 v{T0}, v{L16}, 4, v{T0}")
    A(f"s_lshl_b32 s17, s{TL32}, 15")
    A(f"s_lshl_b32 s28, s{CB}, 1")
    A(f"s_add_u32 s28, s28, s{KH}")
    A("s_lshl_b32 s29, s28, 10")
    A("s_add_u32 s17, s17, s29")
    A(f"s_add_u32 s17, s17, {hex(WS_HF)}")
    A("s_waitcnt lgkmcnt(0)")
    for q in range(8): A(f"v_pk_add_f32 {v(ACC+2*q,2)}, {v(ACC+2*q,2)}, {v(RCV+2*q,2)}")
    for q in range(8): A(f"v_cvt_pk_bf16_f32 v{HP+q}, v{ACC+2*q}, v{ACC+2*q+1}")
    A(f"buffer_store_dwordx4 {v(HP,4)}, v{T0}, s[20:23], s17 offen sc1")
    A(f"buffer_store_dwordx4 {v(HP+4,4)}, v{T0}, s[20:23], s17 offen offset:512 sc1")
    n0 = st.n
    st.flush()
    SM, SQ = RCV, RCV + 2
    A(f"v_pk_add_f32 {v(SM,2)}, {v(ACC,2)}, {v(ACC+2,2)}")
    A(f"v_pk_mul_f32 {v(SQ,2)}, {v(ACC,2)}, {v(ACC,2)}")
    for q in range(1, 8):
        if q > 1: A(f"v_pk_add_f32 {v(SM,2)}, {v(SM,2)}, {v(ACC+2*q,2)}")
        A(f"v_pk_fma_f32 {v(SQ,2)}, {v(ACC+2*q,2)}, {v(ACC+2*q,2)}, {v(SQ,2)}")
    A(f"v_add_f32 v{SM}, v{SM}, v{SM+1}")
    A(f"v_add_f32 v{SM+1}, v{SQ}, v{SQ+1}")
    for x_ in (SM, SM + 1):
        A(f"v_mov_b32 v{T0}, v{x_}")
        A(f"v_permlane32_swap_b32 v{x_}, v{T0}")
        A(f"v_add_f32 v{x_}, v{x_}, v{T0}")
    A(f"v_and_b32 v{SM+1}, 0x7fffffff, v{SM+1}")
    A(f"v_lshlrev_b32 v{T0}, 3, v{II}")
    A(f"s_lshl_b32 s17, s{TL32}, 12")
    A("s_lshl_b32 s29, s28, 8")
    A("s_add_u32 s17, s17, s29")
    A(f"s_add_u32 s17, s17, {hex(WS_ST3)}")
    A("s_mov_b32 exec_hi, 0")
    A(f"s_waitcnt vmcnt({st.n - n0})")
    A(f"buffer_store_dwordx2 {v(SM,2)}, v{T0}, s[20:23], s17 offen sc1")
    A("s_mov_b64 exec, -1")
    stamp(A, 4)
    VT4, VT5 = 24, 25
    NMU, RS, STG, ONES = 26, 28, 32, 40
    HFR, AC4, CS, Z2V, RING = 44, 108, 164, 192, 220
    NR = 7
    A(f"v_lshrrev_b32 v{T0}, 2, v{L16}")
    A(f"v_lshl_add_u32 v{T0}, v{HH}, 4, v{T0}")
    A(f"v_and_b32 v{T1}, 1, v{GG}")
    A(f"v_lshl_add_u32 v{T0}, v{T1}, 2, v{T0}")
    A(f"v_mul_u32_u24 v{T0}, 224, v{T0}")
    A(f"v_and_b32 v{T1}, 3, v{LANE}")
    A(f"v_lshl_add_u32 v{T0}, v{T1}, 3, v{T0}")
    A(f"s_mul_i32 s17, s{KH}, 14336")
    A(f"v_add_u32 v{VT4}, s17, v{T0}")
    A(f"v_add_u32 v{VT5}, {2*28672}, v{VT4}")
    for q in range(4): A(f"v_mov_b32 v{ONES+q}, 0x3f803f80")
    KORD = [0, 4, 1, 5, 2, 6, 3, 7]
    def rd_win(idx):
        pk, tau = idx // 7, idx % 7
        ks = KORD[pk]; grp = ks & 3
        base = (grp & 1) * 28672 + (ks >> 2) * 7168 + tau * 32
        for a_ in range(2):
            A(f"ds_read_b64_tr_b16 {v(RING+4*(idx%NR)+2*a_,2)}, v{(VT4,VT5)[grp>>1]} offset:{base + a_*1792}")
    def gemm4(lo, hi, tiles, hook=None, first=True):
        AH = NR - 1
        for i in range(lo, min(hi, lo + AH)): rd_win(i)
        for i in range(lo, hi):
            pk, tau = i // 7, i % 7
            if hook: hook(i)
            out = min(hi, i + AH) - (i + 1)
            A(f"s_waitcnt lgkmcnt({2*out})")
            for (ab, bf_) in tiles:
                d_ = ab + 4*tau
                c_ = "0" if (pk == 0 and first) else v(d_,4)
                A(f"v_mfma_f32_16x16x32_bf16 {v(d_,4)}, {v(RING+4*(i%NR),4)}, {bf_(pk)}, {c_}")
            if i + AH < hi: rd_win(i + AH)
    t_ones = (CS, lambda pk: v(ONES,4))
    t_h = [(AC4 + 28*p, (lambda pk, p=p: v(HFR+8*pk+4*p,4))) for p in range(2)]
    A("s_waitcnt vmcnt(1)")
    A("s_barrier")
    gemm4(0, 56, [t_ones])
    exchange(CS, AC4, 7)
    A(f"v_lshlrev_b32 v{T1}, 10, v{GG}")
    A(f"v_lshl_add_u32 v{T1}, v{L16}, 3, v{T1}")
    A(f"s_lshl_b32 s17, s{TL32}, 12")
    A(f"s_lshl_b32 s28, s{KH}, 7")
    A("s_add_u32 s17, s17, s28")
    A(f"s_add_u32 s17, s17, {hex(WS_ST3)}")
    A(f"s_lshl_b32 s34, s{TL32}, 15")
    A(f"s_lshl_b32 s28, s{KH}, 13")
    A("s_add_u32 s34, s34, s28")
    A(f"s_add_u32 s34, s34, {hex(WS_HF)}")
    A("s_add_u32 s35, s34, 4096")
    A(f"s_lshl_b32 s28, s{KH}, 14")
    A(f"v_add_u32 v{T2}, s28, v{VL16}")
    A(f"v_xor_b32 v{T3}, 0x4000, v{T2}")
    A(f"s_mov_b32 s36, {f32(-GB)}")
    A(f"s_mov_b32 s37, {f32(-GB)}")
    A("s_waitcnt lgkmcnt(0)")
    for q in range(14): A(f"v_pk_add_f32 {v(CS+2*q,2)}, {v(CS+2*q,2)}, {v(AC4+2*q,2)}")
    poll(A, name, "A", [f"buffer_load_dwordx2 {v(STG+2*q,2)}, v{T1}, s[20:23], s17 offen offset:{q*256} sc1" for q in range(4)],
         [STG+1, STG+3, STG+5, STG+7])
    stamp(A, 5)
    for pk in range(8):
        ks = KORD[pk]
        for p in range(2):
            A(f"buffer_load_dwordx4 {v(HFR+8*pk+4*p,4)}, v{(T2,T3)[p]}, s[20:23], s{34 + (ks>>2)} offen offset:{(ks%4)*1024} sc1")
    A(f"v_pk_add_f32 {v(STG,2)}, {v(STG,2)}, {v(STG+2,2)}")
    A(f"v_pk_add_f32 {v(STG+4,2)}, {v(STG+4,2)}, {v(STG+6,2)}")
    A(f"v_pk_add_f32 {v(STG,2)}, {v(STG,2)}, {v(STG+4,2)}")
    red_g(A, [STG, STG+1])
    ln_from_sums(A, STG, STG+1, D, NMU, RS)
    A(f"v_mov_b32 v{NMU+1}, v{NMU}")
    A(f"v_mov_b32 v{RS+1}, v{RS}")
    A(f"v_mov_b32 v{T4}, {f32(-GA)}")
    A(f"v_mov_b32 v{T5}, {f32(-GA)}")
    st = win_stream(0, (0, 1, 2, 3))
    def hook_a(i):
        pk, tau = i // 7, i % 7
        if tau == 0: A(f"s_waitcnt vmcnt({14 - 2*pk + st.n})")
        if i == 28: A("s_barrier")
        if i > 28 and i % 2 == 1: st.emit(1)
    gemm4(0, 56, t_h, hook_a)
    exchange(AC4 + 28, AC4 + 28, 7)
    def gelu(dst, st=None):
        E = AC4 + 28
        def blk(f, n):
            for q in range(n): A(f(q))
            if st: st.emit(2)
        A("s_waitcnt lgkmcnt(0)")
        blk(lambda q: f"v_pk_add_f32 {v(AC4+2*q,2)}, {v(AC4+2*q,2)}, {v(E+2*q,2)}", 14)
        blk(lambda q: f"v_pk_fma_f32 {v(AC4+2*q,2)}, {v(CS+2*q,2)}, {v(NMU,2)}, {v(AC4+2*q,2)}", 14)
        blk(lambda q: f"v_pk_mul_f32 {v(AC4+2*q,2)}, {v(AC4+2*q,2)}, {v(RS,2)}", 14)
        blk(lambda q: f"v_pk_mul_f32 {v(E+2*q,2)}, {v(AC4+2*q,2)}, {v(AC4+2*q,2)}", 14)
        blk(lambda q: f"v_pk_fma_f32 {v(E+2*q,2)}, {v(E+2*q,2)}, s[36:37], {v(T4,2)}", 14)
        blk(lambda q: f"v_pk_mul_f32 {v(E+2*q,2)}, {v(E+2*q,2)}, {v(AC4+2*q,2)}", 14)
        blk(lambda q: f"v_exp_f32 v{E+q}, v{E+q}", 28)
        blk(lambda q: f"v_pk_add_f32 {v(E+2*q,2)}, {v(E+2*q,2)}, 1.0 op_sel_hi:[1,0]", 14)
        blk(lambda q: f"v_rcp_f32 v{E+q}, v{E+q}", 28)
        blk(lambda q: f"v_pk_mul_f32 {v(dst+2*q,2)}, {v(E+2*q,2)}, {v(AC4+2*q,2)}", 14)
    gelu(Z2V)
    A(f"v_pk_add_f32 {v(STG,2)}, {v(Z2V,2)}, {v(Z2V+2,2)}")
    A(f"v_pk_mul_f32 {v(STG+2,2)}, {v(Z2V,2)}, {v(Z2V,2)}")
    for q in range(1, 14):
        if q > 1: A(f"v_pk_add_f32 {v(STG,2)}, {v(STG,2)}, {v(Z2V+2*q,2)}")
        A(f"v_pk_fma_f32 {v(STG+2,2)}, {v(Z2V+2*q,2)}, {v(Z2V+2*q,2)}, {v(STG+2,2)}")
    A(f"v_add_f32 v{STG}, v{STG}, v{STG+1}")
    A(f"v_add_f32 v{STG+1}, v{STG+2}, v{STG+3}")
    red_g(A, [STG, STG+1])
    A(f"v_and_b32 v{STG+1}, 0x7fffffff, v{STG+1}")
    A(f"s_lshl_b32 s17, s{TL16}, 10")
    A(f"s_add_u32 s17, s17, {hex(WS_ST4)}")
    A(f"s_lshl_b32 s28, s{CB}, 7")
    A("s_add_u32 s28, s28, s17")
    A(f"v_lshlrev_b32 v{T1}, 3, v{L16}")
    A("s_mov_b32 exec_hi, 0"); A("s_mov_b32 exec_lo, 0xffff")
    A(f"buffer_store_dwordx2 {v(STG,2)}, v{T1}, s[20:23], s28 offen sc1")
    A("s_mov_b64 exec, -1")
    stamp(A, 6)
    assert st.n == 14
    A("s_waitcnt vmcnt(1)")
    A("s_barrier")
    gemm4(0, 28, t_h + [t_ones], lambda i: st.emit(1) if i % 2 == 0 else None)
    assert not st.q
    N2, R2 = STG + 4, STG + 6
    A(f"v_lshl_add_u32 v{T1}, v{GG}, 8, v{T1}")
    poll(A, name, "B", [f"buffer_load_dwordx2 {v(STG+2*q,2)}, v{T1}, s[20:23], s17 offen offset:{q*128} sc1" for q in range(2)],
         [STG+1, STG+3])
    A(f"v_pk_add_f32 {v(STG,2)}, {v(STG,2)}, {v(STG+2,2)}")
    red_g(A, [STG, STG+1])
    ln_from_sums(A, STG, STG+1, FH, N2, R2)
    A(f"v_mul_f32 v{N2}, v{N2}, v{R2}")
    A(f"v_mov_b32 v{R2+1}, v{R2}")
    A(f"v_mov_b32 v{N2+1}, v{N2}")
    for q in range(14): A(f"v_pk_fma_f32 {v(Z2V+2*q,2)}, {v(Z2V+2*q,2)}, {v(R2,2)}, {v(N2,2)}")
    for q in range(14): A(f"v_cvt_pk_bf16_f32 v{RING+q}, v{Z2V+2*q}, v{Z2V+2*q+1}")
    RSB = 264
    A(f"s_add_u32 s28, s42, {L_XB}")
    A(f"v_mul_u32_u24 v{T0}, {RSB}, v{L16}")
    A(f"v_lshl_add_u32 v{T0}, v{GG}, 3, v{T0}")
    A(f"v_add_u32 v{T0}, s28, v{T0}")
    for tau in range(7): A(f"ds_write_b64 v{T0}, {v(RING+2*tau,2)} offset:{tau*32}")
    A(f"v_and_b32 v{T1}, 1, v{GG}")
    A(f"v_lshrrev_b32 v{T2}, 2, v{L16}")
    A(f"v_lshl_add_u32 v{T2}, v{T1}, 3, v{T2}")
    A(f"v_mul_u32_u24 v{T2}, {RSB}, v{T2}")
    A(f"v_lshl_add_u32 v{T2}, v{HH}, 5, v{T2}")
    A(f"v_and_b32 v{T3}, 3, v{LANE}")
    A(f"v_lshl_add_u32 v{T2}, v{T3}, 3, v{T2}")
    A(f"v_add_u32 v{T2}, s28, v{T2}")
    A("s_waitcnt lgkmcnt(0)")
    for u in range(4):
        for a_ in range(2):
            A(f"ds_read_b64_tr_b16 {v(Z2V+4*u+2*a_,2)}, v{T2} offset:{u*64 + a_*4*RSB}")
    A(f"v_lshlrev_b32 v{T0}, 10, v{HH}")
    A(f"v_lshl_add_u32 v{T0}, v{II}, 4, v{T0}")
    A(f"s_lshl_b32 s17, s{CB}, 6")
    A(f"s_add_u32 s17, s17, s{TL32}")
    A("s_mul_i32 s17, s17, 7168")
    A(f"s_lshl_b32 s28, s{KH}, 9")
    A("s_add_u32 s17, s17, s28")
    A(f"s_add_u32 s17, s17, {hex(WS_Z2)}")
    A("s_add_u32 s28, s17, 4096")
    for u in range(4):
        A(f"s_waitcnt lgkmcnt({6-2*u})")
        if u == 3: A("s_mov_b32 exec_hi, 0")
        A(f"buffer_store_dwordx4 {v(Z2V+4*u,4)}, v{T0}, s[20:23], s{17 if u < 2 else 28} offen offset:{(u%2)*2048} sc1")
    A("s_mov_b64 exec, -1")
    A(f"s_lshl_b32 s34, s{CB}, 9")
    A(f"s_lshl_b32 s28, s{TL16}, 2")
    A("s_add_u32 s34, s34, s28")
    A(f"s_add_u32 s34, s34, {hex(WS_FC)}")
    A("s_barrier")
    VDO = VWI
    A(f"v_lshrrev_b32 v{T0}, 3, v{LANE}")
    A(f"v_lshlrev_b32 v{T0}, 10, v{T0}")
    A(f"v_and_b32 v{T1}, 1, v{GG}")
    A(f"v_lshlrev_b32 v{T1}, 2, v{T1}")
    A(f"v_xor_b32 v{T1}, v{T1}, v{LANE}")
    A(f"v_and_b32 v{T1}, 7, v{T1}")
    A(f"v_lshl_add_u32 v{T0}, v{T1}, 4, v{T0}")
    A(f"s_mul_i32 s28, s{TH}, {448*1024}")
    A(f"s_mul_i32 s29, s{KH}, {112*1024}")
    A("s_add_u32 s28, s28, s29")
    A(f"s_lshl_b32 s29, s{CB}, 7")
    A("s_add_u32 s28, s28, s29")
    A(f"v_add_u32 v{VDO}, s28, v{T0}")
    A(f"s_mul_i32 s41, s{WV}, 14336")
    srd(A, 56, 50, FH * D * 2)
    def wout_stream(part):
        st = Stream(A)
        for i in range(14):
            st.add(f"s_add_u32 m0, s41, {part*57344 + i*1024}", f"s_mov_b32 s30, {part*224*1024 + i*8192}",
                   f"buffer_load_dwordx4 v{VDO}, s[56:59], s30 offen lds")
        return st
    st = wout_stream(0)
    def hook_b(i):
        if i == 42: flag(A, 34, st.n)
        if i % 2 == 0: st.emit(1)
    gemm4(28, 56, t_h + [t_ones], hook_b, first=False)
    stamp(A, 7)
    exchange(CS, Z2V, 7)
    A("s_waitcnt lgkmcnt(0)")
    for q in range(14): A(f"v_pk_add_f32 {v(CS+2*q,2)}, {v(CS+2*q,2)}, {v(Z2V+2*q,2)}")
    A("s_barrier")
    exchange(AC4 + 28, AC4 + 28, 7)
    BS = VT4
    srd(A, 24, 48, S * 2)
    A(f"s_lshl_b32 s17, s{TL16}, 5")
    A(f"v_lshlrev_b32 v{T0}, 1, v{L16}")
    A(f"buffer_load_ushort v{BS}, v{T0}, s[24:27], s17 offen")
    gelu(AC4)
    Z1P = 232
    for q in range(14): A(f"v_cvt_pk_bf16_f32 v{Z1P+q}, v{AC4+2*q}, v{AC4+2*q+1}")
    A(f"s_lshl_b32 s17, s{CB}, 9")
    A(f"s_lshl_b32 s28, s{WV}, 7")
    A("s_add_u32 s17, s17, s28")
    A(f"s_add_u32 s17, s17, {hex(WS_FC)}")
    A(f"v_lshlrev_b32 v{T1}, 2, v{II}")
    A(f"s_lshl_b32 s34, s{CB}, 6")
    A(f"s_lshl_b32 s28, s{WV}, 4")
    A("s_add_u32 s34, s34, s28")
    A("s_mul_i32 s34, s34, 7168")
    A(f"s_add_u32 s34, s34, {hex(WS_Z2)}")
    A("s_lshl_b32 s28, s55, 7")
    A(f"v_lshl_add_u32 v{T3}, v{LANE}, 10, s28")
    poll(A, name, "C", [f"buffer_load_dword v{T2}, v{T1}, s[20:23], s17 offen sc1"], [T2])
    stamp(A, 8)
    AC5, ZF = 32, 144
    def ldz(ks, tau):
        if ks >= 16: return
        if tau == 0 and ks % 4 == 0:
            A(f"s_xor_b32 s29, s31, {(ks//4) << 8}")
            A("s_mul_i32 s29, s29, 112")
            A("s_add_u32 s29, s29, s34")
        if tau == 0: A(f"s_add_u32 s28, s29, {(ks%4)*7168}")
        if tau == 4: A("s_add_u32 s28, s28, 4096")
        A(f"buffer_load_dwordx4 {v(ZF+28*(ks%3)+4*tau,4)}, v{VL16}, s[20:23], s28 offen offset:{(tau%4)*1024} sc1")
    for ks in range(3):
        for tau in range(7): ldz(ks, tau)
    NT = 0
    for ks in range(16):
        for tau in range(7):
            issued = min(112, (ks + 3) * 7 + tau)
            A(f"s_waitcnt vmcnt({issued - (ks*7+tau) - 1 + (NT if ks < 3 else 0)})")
            for p in range(4):
                d_ = AC5 + 28*p + 4*tau
                c_ = "0" if ks == 0 else v(d_,4)
                A(f"v_mfma_f32_16x16x32_bf16 {v(d_,4)}, {v(ZF+28*(ks%3)+4*tau,4)}, {a(ks*16+4*p,4)}, {c_}")
            ldz(ks + 3, tau)
    stamp(A, 9)
    for p in range(1, 4):
        A(f"s_xor_b32 s17, s{WV}, {p}")
        A("s_mul_i32 s17, s17, 21504")
        A(f"s_add_u32 s17, s17, {L_RED}")
        A(f"v_add_u32 v{T0+p}, s17, v{VL16}")
    A("s_barrier")
    for p in range(1, 4):
        for q in range(7): A(f"ds_write_b128 v{T0+p}, {v(AC5+28*p+4*q,4)} offset:{(p-1)*7168+q*1024}")
    A(f"s_mul_i32 s17, s{WV}, 21504")
    A(f"s_add_u32 s17, s17, {L_RED}")
    A(f"v_add_u32 v{T0}, s17, v{VL16}")
    A(f"v_lshlrev_b32 v{T4}, 16, v{BS}")
    A(f"v_mov_b32 v{T5}, v{T4}")
    for q in range(14): A(f"v_pk_add_f32 {v(AC5+2*q,2)}, {v(AC5+2*q,2)}, {v(T4,2)}")
    for q in range(14):
        A(f"v_lshlrev_b32 v{ZF+2*q}, 16, v{Z1P+q}")
        A(f"v_and_b32 v{ZF+2*q+1}, 0xffff0000, v{Z1P+q}")
    A("s_waitcnt lgkmcnt(0)")
    A("s_barrier")
    for p in range(1, 4):
        for q in range(7): A(f"ds_read_b128 {v(AC5+28*p+4*q,4)}, v{T0} offset:{(p-1)*7168+q*1024}")
    A(f"v_lshlrev_b32 v{T0}, 9, v{GG}")
    A(f"v_lshl_add_u32 v{T0}, v{L16}, 4, v{T0}")
    A(f"s_mul_i32 s17, s{TL32}, 56")
    A(f"s_mul_i32 s28, s{CB}, 7")
    A("s_add_u32 s17, s17, s28")
    A("s_lshl_b32 s17, s17, 10")
    A(f"s_lshl_b32 s28, s{KH}, 8")
    A("s_add_u32 s17, s17, s28")
    A(f"s_add_u32 s17, s17, {hex(WS_Y)}")
    A("s_add_u32 s28, s17, 4096")
    A(f"v_and_b32 v{T1}, 0x3ff, v{T0}")
    A(f"v_lshl_add_u32 v{T1}, v{HH}, 3, v{T1}")
    for p in range(1, 4):
        A(f"s_waitcnt lgkmcnt({14-7*(p-1)})")
        for q in range(14): A(f"v_pk_add_f32 {v(AC5+2*q,2)}, {v(AC5+2*q,2)}, {v(AC5+28*p+2*q,2)}")
    for q in range(14): A(f"v_pk_mul_f32 {v(AC5+2*q,2)}, {v(AC5+2*q,2)}, {v(ZF+2*q,2)}")
    YP = ZF + 28
    for q in range(14): A(f"v_cvt_pk_bf16_f32 v{YP+q}, v{AC5+2*q}, v{AC5+2*q+1}")
    for u in range(3):
        A(f"buffer_store_dwordx4 {v(YP+4*u,4)}, v{T0}, s[20:23], s{17 if u < 2 else 28} offen offset:{(u%2)*2048} sc1")
    A(f"buffer_store_dwordx2 {v(YP+12,2)}, v{T1}, s[20:23], s28 offen offset:2048 sc1")
    A("s_barrier")
    st = wout_stream(1)
    st.flush()
    A(f"s_lshl_b32 s17, s{TL32}, 8")
    A(f"s_lshr_b32 s28, s{CB}, 2")
    A("s_lshl_b32 s28, s28, 7")
    A("s_add_u32 s17, s17, s28")
    A(f"s_and_b32 s28, s{CB}, 3")
    A("s_lshl_b32 s28, s28, 1")
    A(f"s_add_u32 s28, s28, s{KH}")
    A("s_lshl_b32 s28, s28, 2")
    A("s_add_u32 s17, s17, s28")
    A(f"s_add_u32 s17, s17, {hex(WS_FD)}")
    flag(A, 17, 14)
    stamp(A, 10)
    A(f"s_mul_i32 s17, s{KH}, 28672")
    A(f"v_add_u32 v{T2}, s17, v{VT0}")
    A(f"v_xor_b32 v{T3}, 64, v{T2}")
    A(f"v_add_u32 v{T4}, 57344, v{T2}")
    A(f"v_add_u32 v{T5}, 57344, v{T3}")
    def rd_wout(c):
        for kap in range(7):
            ks = c * 7 + kap
            for p in range(2):
                for a_ in range(2):
                    row = (32*(kap>>1) + 8*(kap&1) + 16*a_ if kap < 6 else 96 + 8*a_)
                    A(f"ds_read_b64_tr_b16 {a(8*ks+4*p+2*a_,2)}, v{(T2,T3,T4,T5)[2*(c>>1)+p]} offset:{(c&1)*14336 + row*128}")
    rd_wout(0); rd_wout(1)
    A("s_waitcnt vmcnt(1)")
    A("s_barrier")
    rd_wout(2); rd_wout(3)
    A(f"s_lshl_b32 s17, s{TL32}, 8")
    A(f"s_lshl_b32 s28, s{KH}, 7")
    A("s_add_u32 s17, s17, s28")
    A(f"s_add_u32 s17, s17, {hex(WS_FD)}")
    A(f"v_and_b32 v{T1}, 7, v{LANE}")
    A(f"v_lshlrev_b32 v{T1}, 2, v{T1}")
    A(f"s_mul_i32 s34, s{TL32}, 56")
    A(f"s_mul_i32 s28, s{KH}, 28")
    A("s_add_u32 s34, s34, s28")
    A("s_lshl_b32 s34, s34, 10")
    A(f"s_add_u32 s34, s34, {hex(WS_Y)}")
    poll(A, name, "D", [f"buffer_load_dword v{VT4}, v{T1}, s[20:23], s17 offen sc1"], [VT4])
    stamp(A, 11)
    YF, AC6, RC6 = 32, 144, 176
    def ld_y(ks):
        if ks >= 28: return
        if ks % 4 == 0 and ks: A("s_add_u32 s34, s34, 4096")
        A(f"buffer_load_dwordx4 {v(YF+4*ks,4)}, v{VL16}, s[20:23], s34 offen offset:{(ks%4)*1024} sc1")
    LA = 12
    for ks in range(LA): ld_y(ks)
    A("s_waitcnt lgkmcnt(0)")
    for ks in range(28):
        A(f"s_waitcnt vmcnt({min(28, ks + LA) - ks - 1})")
        for p in range(2):
            c_ = "0" if ks == 0 else v(AC6+16*p,16)
            A(f"v_mfma_f32_32x32x16_bf16 {v(AC6+16*p,16)}, {a(8*ks+4*p,4)}, {v(YF+4*ks,4)}, {c_}")
        ld_y(ks + LA)
    exchange(AC6 + 16, RC6, 4)
    for q in range(8):
        A(f"v_lshlrev_b32 v{T0}, 16, v{HP+q}")
        A(f"v_and_b32 v{T1}, 0xffff0000, v{HP+q}")
        A(f"v_add_f32 v{AC6+2*q}, v{AC6+2*q}, v{T0}")
        A(f"v_add_f32 v{AC6+2*q+1}, v{AC6+2*q+1}, v{T1}")
    srd(A, 24, 52, S * D * 2)
    A(f"v_lshl_add_u32 v{T0}, v{HH}, 4, v{VXO}")
    A("s_waitcnt lgkmcnt(0)")
    for q in range(8): A(f"v_pk_add_f32 {v(AC6+2*q,2)}, {v(AC6+2*q,2)}, {v(RC6+2*q,2)}")
    for q in range(8): A(f"v_cvt_pk_bf16_f32 v{RC6+q}, v{AC6+2*q}, v{AC6+2*q+1}")
    for e in range(2):
        A(f"v_permlane32_swap_b32 v{RC6+4*e}, v{RC6+4*e+2}")
        A(f"v_permlane32_swap_b32 v{RC6+4*e+1}, v{RC6+4*e+3}")
    A(f"buffer_store_dwordx4 {v(RC6,4)}, v{T0}, s[24:27], 0 offen")
    A(f"buffer_store_dwordx4 {v(RC6+4,4)}, v{T0}, s[24:27], 0 offen offset:32")
    stamp_flush(A, name, 1, 12)
    A.label(f"{name}_end")
    A("s_endpgm")
    A.label(f"{name}_slow")
    A(f"s_add_u32 s40, s18, {hex(WS_KF)}")
    A("s_mov_b32 s35, 64")
    for t in range(4): A(f"v_mov_b32 v{mm[t]}, 0xff800000")
    A.label(f"{name}_mloop")
    A(f"buffer_load_dwordx4 {r(KF[7],4)}, v{VL16}, s[20:23], s40 offen")
    A("s_waitcnt vmcnt(0)")
    for t in range(4):
        A(f"v_mfma_f32_32x32x16_bf16 {v(SB[0],16)}, {r(KF[7],4)}, {v(Q[t],4)}, 0")
        for q in range(8):
            A(f"v_max3_f32 v{mm[t]}, v{SB[0]+2*q}, v{SB[0]+2*q+1}, v{mm[t]}")
    A("s_add_u32 s40, s40, 1024")
    A("s_sub_u32 s35, s35, 1")
    A("s_cmp_lg_u32 s35, 0")
    A(f"s_cbranch_scc1 {name}_mloop")
    for t in range(4):
        A(f"v_mov_b32 v{T0}, v{mm[t]}")
        A(f"v_permlane32_swap_b32 v{mm[t]}, v{T0}")
        A(f"v_max_f32 v{mm[t]}, v{mm[t]}, v{T0}")
    A(f"s_branch {name}_fast")
    return A.finish() + kernel_desc(name, 256, 256), (name, 256, 256, 163840)
```

```python
from common import *
WARM = False
NT = os.environ.get('K1NT', '')
CODEPF = int(os.environ.get('CODEPF', '1'))
DSTART = int(os.environ.get('K1DS', '4'))

def gen_k1(name="k1_qkv_kernel"):
    A = Asm()
    kernel_head(A, name)
    V = VAlloc(1)
    A("s_cmp_ge_u32 s2, 256")
    A(f"s_cbranch_scc1 {name}_end")
    if os.environ.get("BADMAP"):
        A("s_lshr_b32 s3, s2, 5")
        A("s_and_b32 s2, s2, 31")
        A("s_lshl_b32 s2, s2, 3")
        A("s_or_b32 s2, s2, s3")
    stamp(A, 0)
    A(f"s_load_dwordx4 s[4:7], s[0:1], {KA_X}")
    A(f"s_load_dwordx2 s[8:9], s[0:1], {KA_WS}")
    if WARM:
        A(f"s_load_dwordx2 s[32:33], s[0:1], {KA_WO}")
        A(f"s_load_dwordx4 s[36:39], s[0:1], {KA_WIN}")
        A(f"s_load_dwordx2 s[40:41], s[0:1], {KA_WOUT}")
    A("s_and_b32 s10, s2, 7")
    A("s_lshr_b32 s11, s2, 3")
    A("s_lshr_b32 s12, s10, 1")
    A("s_lshl_b32 s12, s12, 3")
    A("s_and_b32 s28, s11, 7")
    A("s_add_u32 s12, s12, s28")
    A("s_and_b32 s13, s10, 1")
    A("s_lshl_b32 s13, s13, 2")
    A("s_lshr_b32 s14, s11, 3")
    A("s_add_u32 s13, s13, s14")
    A("s_lshl_b32 s14, s14, 1")
    A("s_xor_b32 s28, s28, s14")
    lane, t0, t1, t2 = V(), V(), V(), V()
    A(f"v_and_b32 v{lane}, 63, v0")
    A(f"v_lshrrev_b32 v{t0}, 6, v0")
    A(f"v_readfirstlane_b32 s14, v{t0}")
    A("s_and_b32 s15, s14, 1")
    A("s_lshr_b32 s16, s14, 1")
    vx, vw = V(), V()
    A("s_lshl_b32 s18, s12, 6")
    A("s_lshl_b32 s19, s14, 4")
    A("s_add_u32 s18, s18, s19")
    A(f"v_lshrrev_b32 v{t0}, 3, v{lane}")
    A(f"v_add_u32 v{t1}, s18, v{t0}")
    A(f"v_lshlrev_b32 v{t1}, 10, v{t1}")
    A(f"v_and_b32 v{t2}, 7, v{lane}")
    A(f"v_lshl_add_u32 v{vx}, v{t2}, 4, v{t1}")
    A(f"v_add_u32 v{t1}, s19, v{t0}")
    A(f"v_mul_u32_u24 v{t1}, 3072, v{t1}")
    A(f"v_bfe_u32 v{t0}, v{lane}, 4, 1")
    A(f"v_lshlrev_b32 v{t0}, 2, v{t0}")
    A(f"v_xor_b32 v{vw}, v{t0}, v{t2}")
    A(f"v_lshl_add_u32 v{vw}, v{vw}, 4, v{t1}")
    A("s_lshl_b32 s19, s13, 7")
    A(f"v_add_u32 v{vw}, s19, v{vw}")
    A("s_mul_i32 s17, s14, 6144")
    dummy, vt = V(), V()
    A("s_lshl_b32 s19, s11, 2")
    A("s_add_u32 s19, s19, s14")
    A(f"s_mul_i32 s19, s19, {4*3072}")
    A("s_and_b32 s18, s10, 1")
    A("s_lshl_b32 s18, s18, 9")
    A("s_add_u32 s19, s19, s18")
    A(f"v_lshrrev_b32 v{t0}, 2, v{lane}")
    A(f"v_and_b32 v{t1}, 3, v{lane}")
    A(f"v_lshlrev_b32 v{t1}, 7, v{t1}")
    A(f"v_lshl_add_u32 v{t0}, v{t0}, 10, v{t1}")
    A(f"v_add_u32 v{vt}, s19, v{t0}")
    X = V(128)
    A("s_waitcnt lgkmcnt(0)")
    stamp(A, 1)
    srd(A, 20, 4, S * D * 2)
    srd(A, 24, 6, D * 3 * D * 2)
    XR = lambda s_, u: X + 64 + 8*s_ + 4*u
    for s_ in range(8):
        A(f"s_xor_b32 s30, s28, {s_}")
        A("s_lshl_b32 s30, s30, 7")
        A("s_add_u32 s31, s30, 0x2000")
        A(f"buffer_load_dwordx4 {v(XR(s_,0),4)}, v{vx}, s[20:23], s30 offen {NT}")
        A(f"buffer_load_dwordx4 {v(XR(s_,1),4)}, v{vx}, s[20:23], s31 offen {NT}")
    A("s_mov_b32 exec_hi, 0xffff")
    A(f"buffer_load_dword v{dummy}, v{vt}, s[24:27], 0 offen {NT}")
    A("s_mov_b64 exec, -1")
    stamp(A, 2)
    SLOT = [65536 + 24576*(i%4) for i in range(8)]
    def dma_stage(j):
        out = []
        for c in range(6):
            seg, u = c // 2, c % 2
            l = [f"s_add_u32 m0, s17, {SLOT[j] + c*1024}"]
            if c == 0:
                l = [f"s_xor_b32 s29, s28, {j}", f"s_mul_i32 s29, s29, {64*3072}"] + l
            l.append(f"s_add_u32 s30, s29, {u*8*3072 + seg*1024}")
            l.append(f"buffer_load_dwordx4 v{vw}, s[24:27], s30 offen lds")
            out.append(l)
        return out
    NEARLY = 0
    for j in range(NEARLY):
        for l in dma_stage(j):
            for x_ in l: A(x_)
    pend = [l for j in range(NEARLY, 4) for l in dma_stage(j)]
    nd = 1
    stamp(A, 3)
    st = [V() for _ in range(4)]
    for x_ in st: A(f"v_mov_b32 v{x_}, 0")
    A("s_mov_b32 s34, 0x3f803f80")
    for s_ in range(8):
        A(f"s_waitcnt vmcnt({14 - 2*s_ + nd})")
        if s_ == 0: stamp(A, 4)
        if s_ == 7: stamp(A, 5)
        for q in range(4):
            for u in range(2):
                A(f"v_dot2_f32_bf16 v{st[2*u]}, v{XR(s_,u)+q}, s34, v{st[2*u]}")
                A(f"v_dot2_f32_bf16 v{st[2*u+1]}, v{XR(s_,u)+q}, v{XR(s_,u)+q}, v{st[2*u+1]}")
    for mod in ("quad_perm:[1,0,3,2]", "quad_perm:[2,3,0,1]", "row_half_mirror"):
        for x_ in st:
            A(f"v_add_f32_dpp v{x_}, v{x_}, v{x_} {mod} row_mask:0xf bank_mask:0xf")
    rs = [V(2), V(2)]; nm = [V(2), V(2)]
    for u in range(2):
        A(f"v_mul_f32 v{nm[u]}, {f32(-1.0/D)}, v{st[2*u]}")
        A(f"v_mul_f32 v{st[2*u+1]}, {f32(1.0/D)}, v{st[2*u+1]}")
        A(f"v_fma_f32 v{st[2*u+1]}, -v{nm[u]}, v{nm[u]}, v{st[2*u+1]}")
        A(f"v_max_f32 v{st[2*u+1]}, 0, v{st[2*u+1]}")
        A(f"v_add_f32 v{st[2*u+1]}, {f32(1e-5)}, v{st[2*u+1]}")
        A(f"v_rsq_f32 v{rs[u]}, v{st[2*u+1]}")
    for u in range(2):
        A(f"v_mul_f32 v{nm[u]}, v{nm[u]}, v{rs[u]}")
        A(f"v_mov_b32 v{rs[u]+1}, v{rs[u]}")
        A(f"v_mov_b32 v{nm[u]+1}, v{nm[u]}")
    stamp(A, 6)
    aw = [V(), V()]
    A(f"v_lshrrev_b32 v{t0}, 4, v{lane}")
    A(f"v_xor_b32 v{t0}, v{t0}, v{t2}")
    A(f"v_lshrrev_b32 v{t1}, 3, v{lane}")
    A(f"v_lshlrev_b32 v{t1}, 7, v{t1}")
    A(f"v_lshl_add_u32 v{t0}, v{t0}, 4, v{t1}")
    A("s_lshl_b32 s19, s14, 11")
    A(f"v_add_u32 v{aw[0]}, s19, v{t0}")
    A(f"v_xor_b32 v{aw[1]}, 0x440, v{aw[0]}")
    tp = [V(8), V(8)]
    k = 0
    for s_ in range(8):
        for u in range(2):
            r_, t_ = XR(s_, u), tp[k % 2]
            for q in range(4):
                A(f"v_lshlrev_b32 v{t_+2*q}, 16, v{r_+q}")
                A(f"v_and_b32 v{t_+2*q+1}, 0xffff0000, v{r_+q}")
            for q in range(4): A(f"v_pk_fma_f32 {v(t_+2*q,2)}, {v(t_+2*q,2)}, {v(rs[u],2)}, {v(nm[u],2)}")
            for q in range(4): A(f"v_cvt_pk_bf16_f32 v{r_+q}, v{t_+2*q}, v{t_+2*q+1}")
            A(f"ds_write_b128 v{aw[u]}, {v(r_,4)} offset:{s_*8192}")
            if k >= DSTART:
                for _ in range(2 if k >= 16 - max(0, 12 - (16 - DSTART)) else 1):
                    for x_ in pend.pop(0): A(x_)
                    nd += 1
            k += 1
    npre = nd - 1
    stamp(A, 7)
    hh, ii, l16 = V(), V(), V()
    A(f"v_lshrrev_b32 v{hh}, 5, v{lane}")
    A(f"v_and_b32 v{ii}, 31, v{lane}")
    A(f"v_and_b32 v{l16}, 15, v{lane}")
    axr = [V() for _ in range(4)]
    A("s_lshl_b32 s19, s15, 12")
    A(f"v_lshl_add_u32 v{t0}, v{ii}, 7, s19")
    A(f"v_lshrrev_b32 v{t1}, 1, v{l16}")
    A(f"v_xor_b32 v{t1}, v{t1}, v{hh}")
    A(f"v_lshl_add_u32 v{axr[0]}, v{t1}, 4, v{t0}")
    for s_ in range(1, 4): A(f"v_xor_b32 v{axr[s_]}, {32*s_}, v{axr[0]}")
    awr = [V() for _ in range(3)]
    A(f"v_lshrrev_b32 v{t0}, 2, v{l16}")
    A(f"v_lshl_add_u32 v{t0}, v{hh}, 3, v{t0}")
    A(f"v_lshlrev_b32 v{t0}, 7, v{t0}")
    A(f"v_lshrrev_b32 v{t1}, 4, v{ii}")
    A(f"v_lshl_add_u32 v{t0}, v{t1}, 5, v{t0}")
    A(f"v_and_b32 v{t1}, 3, v{lane}")
    A(f"v_lshl_add_u32 v{t0}, v{t1}, 3, v{t0}")
    A(f"v_lshrrev_b32 v{t1}, 3, v{l16}")
    A(f"v_xor_b32 v{t1}, s16, v{t1}")
    A(f"v_lshl_add_u32 v{awr[0]}, v{t1}, 6, v{t0}")
    A(f"v_add_u32 v{awr[1]}, 0x10000, v{awr[0]}")
    A(f"v_add_u32 v{awr[2]}, 0x20000, v{awr[0]}")
    acc = [V(16) for _ in range(3)]
    wf = [[V(4) for _ in range(3)] for _ in range(2)]
    A(f"s_waitcnt vmcnt({npre - 6}) lgkmcnt(0)")
    A("s_barrier")
    stamp(A, 8)
    def rd_w(k, seg):
        j, s_ = k // 4, k % 4
        base = SLOT[j] + s_ * 6144 + seg * 2048
        for a_ in range(2):
            o = base + 512 * a_
            A(f"ds_read_b64_tr_b16 {v(wf[k%2][seg]+2*a_,2)}, v{awr[o>>16]} offset:{o & 0xffff}")
    def rd_x(k): A(f"ds_read_b128 {v(X+4*(k%2),4)}, v{axr[k%4]} offset:{(k//4)*8192}")
    rd_x(0)
    for g in range(3): rd_w(0, g)
    tags = [i // 6 for i in range(npre)]
    pend = [((npre + i) // 6, l) for i, l in enumerate(pend)]
    def emit(n):
        for _ in range(n):
            if pend:
                tag, l = pend.pop(0)
                for x_ in l: A(x_)
                tags.append(tag)
    def wait_stage(j):
        idx = max(i for i, t in enumerate(tags) if t == j)
        assert sum(1 for t in tags if t == j) == 6
        return len(tags) - 1 - idx
    for k in range(32):
        j, s_ = k // 4, k % 4
        b = k % 2
        last = k == 31
        c_ = (lambda g: "0" if k == 0 else v(acc[g], 16))
        if k == 16: stamp(A, 10)
        if s_ == 3 and not last:
            A(f"s_waitcnt vmcnt({wait_stage(j+1)}) lgkmcnt(0)")
            A("s_barrier")
            if j < 4: pend += [(4 + j, l) for l in dma_stage(4 + j)]
            if j == 3 and CODEPF:
                pend.append((9, ["s_getpc_b64 s[44:45]", f"{name}_pc0:", f"s_add_u32 s44, s44, k2_main_kernel-{name}_pc0", "s_addc_u32 s45, s45, 0",
                                 "s_mov_b32 s46, k2_main_kernel_end-k2_main_kernel", "s_mov_b32 s47, 0x00020000",
                                 "s_lshl_b32 s18, s11, 2", "s_add_u32 s18, s18, s14", "s_lshl_b32 s18, s18, 9",
                                 f"v_lshlrev_b32 v{vt}, 7, v{lane}", "s_mov_b64 exec, 15",
                                 f"buffer_load_dword v{dummy}, v{vt}, s[44:47], s18 offen", "s_mov_b64 exec, -1"]))
        else:
            A("s_waitcnt lgkmcnt(4)")
        A(f"v_mfma_f32_32x32x16_bf16 {v(acc[0],16)}, {v(wf[b][0],4)}, {v(X+4*b,4)}, {c_(0)}")
        if not last: rd_x(k + 1); rd_w(k + 1, 0)
        A(f"s_waitcnt lgkmcnt({2 if last else 5})")
        A(f"v_mfma_f32_32x32x16_bf16 {v(acc[1],16)}, {v(wf[b][1],4)}, {v(X+4*b,4)}, {c_(1)}")
        if not last: rd_w(k + 1, 1)
        emit(1)
        A(f"s_waitcnt lgkmcnt({0 if last else 5})")
        A(f"v_mfma_f32_32x32x16_bf16 {v(acc[2],16)}, {v(X+4*b,4)}, {v(wf[b][2],4)}, {c_(2)}")
        if not last: rd_w(k + 1, 2)
        emit(1)
    assert not pend
    stamp(A, 11)
    srd(A, 20, 8, WS_SIZE)
    a0, a1, a2 = axr[0], axr[1], axr[2]
    stp = tp[0]
    A(f"v_mov_b32 v{stp}, -1")
    A(f"v_mov_b32 v{stp+1}, -1")
    A(f"v_lshlrev_b32 v{a1}, 3, v0")
    A("s_lshl_b32 s18, s2, 11")
    A(f"s_add_u32 s18, s18, {hex(WS_SY)}")
    A(f"buffer_store_dwordx2 {v(stp,2)}, v{a1}, s[20:23], s18 offen")
    A("s_lshl_b32 s18, s12, 1")
    A("s_add_u32 s18, s18, s15")
    A("s_lshl_b32 s19, s13, 2")
    A("s_lshl_b32 s28, s16, 1")
    A("s_add_u32 s19, s19, s28")
    A("s_lshl_b32 s28, s19, 6")
    A("s_add_u32 s28, s28, s18")
    A("s_lshl_b32 s28, s28, 10")
    A(f"v_lshlrev_b32 v{a0}, 4, v{lane}")
    A(f"v_add_u32 v{a0}, s28, v{a0}")
    A(f"v_lshrrev_b32 v{a2}, 4, v{ii}")
    A(f"v_lshlrev_b32 v{a2}, 16, v{a2}")
    A(f"v_lshl_add_u32 v{a2}, v{hh}, 8, v{a2}")
    A(f"v_lshl_add_u32 v{a2}, v{l16}, 4, v{a2}")
    A(f"v_add_u32 v{a2}, s28, v{a2}")
    A(f"s_mov_b32 s34, {f32(0.25*LOG2E)}")
    A(f"s_mov_b32 s35, {f32(0.25*LOG2E)}")
    pk = [X + 8, X + 16, X + 24]
    for g in range(3):
        if g == 0:
            for p_ in range(8): A(f"v_pk_mul_f32 {v(acc[0]+2*p_,2)}, {v(acc[0]+2*p_,2)}, s[34:35]")
        for p_ in range(8): A(f"v_cvt_pk_bf16_f32 v{pk[g]+p_}, v{acc[g]+2*p_}, v{acc[g]+2*p_+1}")
        A(f"s_mov_b32 s30, {hex((WS_QF, WS_KF, WS_VF)[g])}")
        if g < 2:
            A(f"s_add_u32 s29, s30, 0x10000")
            A(f"buffer_store_dwordx4 {v(pk[g],4)}, v{a0}, s[20:23], s30 offen")
            A(f"buffer_store_dwordx4 {v(pk[g]+4,4)}, v{a0}, s[20:23], s29 offen")
        else:
            A(f"buffer_store_dwordx4 {v(pk[2],4)}, v{a2}, s[20:23], s30 offen")
            A(f"buffer_store_dwordx4 {v(pk[2]+4,4)}, v{a2}, s[20:23], s30 offen offset:512")
    A(f"v_mov_b32 v{t0}, 0")
    A(f"v_mov_b32 v{t1}, 0")
    for q in range(4):
        A(f"v_dot2_f32_bf16 v{t0}, v{pk[1]+q}, v{pk[1]+q}, v{t0}")
        A(f"v_dot2_f32_bf16 v{t1}, v{pk[1]+4+q}, v{pk[1]+4+q}, v{t1}")
    A(f"v_permlane32_swap_b32 v{t0}, v{t1}")
    A(f"v_add_f32 v{t0}, v{t0}, v{t1}")
    for sh in (8, 4, 2, 1):
        A(f"v_max_f32_dpp v{t0}, v{t0}, v{t0} row_ror:{sh} row_mask:0xf bank_mask:0xf")
    A("s_lshl_b32 s28, s19, 9")
    A("s_lshl_b32 s29, s18, 3")
    A("s_add_u32 s28, s28, s29")
    A(f"v_lshrrev_b32 v{a1}, 4, v{ii}")
    A(f"v_lshlrev_b32 v{a1}, 2, v{a1}")
    A(f"v_lshl_add_u32 v{a1}, v{hh}, 9, v{a1}")
    A(f"v_add_u32 v{a1}, s28, v{a1}")
    A(f"s_mov_b32 s30, {hex(WS_KN)}")
    A("s_mov_b32 exec_lo, 0x00010001")
    A("s_mov_b32 exec_hi, 0x00010001")
    A(f"buffer_store_dword v{t0}, v{a1}, s[20:23], s30 offen")
    stamp_flush(A, name, 0, 12)
    A.label(f"{name}_end")
    A("s_endpgm")
    return A.finish() + kernel_desc(name, V.hi), (name, 256, 256, 163840)
```

```python
from common import *
import math
GA = 2 * math.sqrt(2 / math.pi) * LOG2E
GB = GA * 0.044715
THRESH = 40.0
WNT = os.environ.get('WNT', 'nt')
SIDE_STEP = float(os.environ.get('SSTEP', '3.6'))

LANE, T0, T1, T2, T3, T4, T5, VL16, HH, II, L16, GG = 1, 2, 3, 4, 5, 6, 7, 8, 9, 10, 11, 12
RB, CB, WV, TH, KH, TL32, TL16 = 10, 11, 14, 15, 16, 19, 43
CHS = 16384
L_WO = 64 * 1024
L_XB = 132 * 1024
L_RED = 56 * 1024

def poll(A, name, tag, loads, cond_regs):
    A(f"s_mov_b32 s40, {SPIN_MAX}")
    A.label(f"{name}_poll{tag}")
    for l in loads: A(l)
    A("s_waitcnt vmcnt(0)")
    acc = cond_regs[0]
    if len(cond_regs) > 1:
        A(f"v_max_u32 v{T0}, v{cond_regs[0]}, v{cond_regs[1]}")
        for c in cond_regs[2:]: A(f"v_max_u32 v{T0}, v{T0}, v{c}")
        acc = T0
    A(f"v_cmp_eq_u32 vcc, -1, v{acc}")
    A("s_sub_u32 s40, s40, 1")
    A(f"s_cbranch_scc1 {name}_done{tag}")
    A(f"s_cbranch_vccnz {name}_poll{tag}")
    A.label(f"{name}_done{tag}")

def red_g(A, regs):
    for x in regs:
        A(f"v_mov_b32 v{T0}, v{x}")
        A(f"v_permlane32_swap_b32 v{x}, v{T0}")
        A(f"v_add_f32 v{x}, v{x}, v{T0}")
        A(f"v_mov_b32 v{T0}, v{x}")
        A(f"v_permlane16_swap_b32 v{x}, v{T0}")
        A(f"v_add_f32 v{x}, v{x}, v{T0}")

def ln_from_sums(A, sm, sq, n, nmu, rs):
    A(f"v_mul_f32 v{nmu}, {f32(-1.0/n)}, v{sm}")
    A(f"v_mul_f32 v{sq}, {f32(1.0/n)}, v{sq}")
    A(f"v_fma_f32 v{sq}, -v{nmu}, v{nmu}, v{sq}")
    A(f"v_max_f32 v{sq}, 0, v{sq}")
    A(f"v_add_f32 v{sq}, {f32(1e-5)}, v{sq}")
    A(f"v_rsq_f32 v{rs}, v{sq}")

def flag(A, sreg, wait):
    A(f"v_mov_b32 v{T0}, 0")
    A(f"v_mov_b32 v{T1}, 1")
    A("s_mov_b64 exec, 1")
    A(f"s_waitcnt vmcnt({wait})")
    A(f"buffer_store_dword v{T1}, v{T0}, s[20:23], s{sreg} offen sc1")
    A("s_mov_b64 exec, -1")

class Stream:
    def __init__(self, A): self.A = A; self.q = []; self.n = 0
    def add(self, *lines): self.q.append(lines)
    def emit(self, k=1):
        for _ in range(k):
            if self.q:
                for l in self.q.pop(0): self.A(l)
                self.n += 1
    def flush(self): self.emit(len(self.q))

def gen_k2f(name="k2_main_kernel"):
    A = Asm()
    kernel_head(A, name)
    A("s_cmp_ge_u32 s2, 256")
    A(f"s_cbranch_scc1 {name}_end")
    if os.environ.get("BADMAP"):
        A("s_lshr_b32 s3, s2, 5")
        A("s_and_b32 s2, s2, 31")
        A("s_lshl_b32 s2, s2, 3")
        A("s_or_b32 s2, s2, s3")
    stamp(A, 0)
    A(f"s_load_dwordx2 s[8:9], s[0:1], {KA_WS}")
    A(f"s_load_dwordx2 s[4:5], s[0:1], {KA_X}")
    A(f"s_load_dwordx2 s[6:7], s[0:1], {KA_WO}")
    A(f"s_load_dwordx8 s[44:51], s[0:1], {KA_WIN}")
    A(f"s_load_dwordx2 s[52:53], s[0:1], {KA_OUT}")
    A("s_and_b32 s12, s2, 7")
    A("s_lshr_b32 s13, s2, 3")
    A(f"s_lshr_b32 s{RB}, s12, 1")
    A(f"s_lshl_b32 s{RB}, s{RB}, 3")
    A("s_and_b32 s17, s13, 7")
    A("s_mov_b32 s55, s17")
    A(f"s_add_u32 s{RB}, s{RB}, s17")
    A(f"s_and_b32 s{CB}, s12, 1")
    A(f"s_lshl_b32 s{CB}, s{CB}, 2")
    A("s_lshr_b32 s17, s13, 3")
    A(f"s_add_u32 s{CB}, s{CB}, s17")
    A("s_lshl_b32 s31, s17, 8")
    HEAD, QB = 12, 13
    A("s_lshl_b32 s12, s12, 2")
    A("s_and_b32 s17, s13, 3")
    A("s_add_u32 s12, s12, s17")
    A("s_lshr_b32 s13, s2, 5")
    A(f"v_and_b32 v{LANE}, 63, v0")
    A(f"v_lshrrev_b32 v{T0}, 6, v0")
    A(f"v_readfirstlane_b32 s{WV}, v{T0}")
    A(f"s_lshr_b32 s{TH}, s{WV}, 1")
    A(f"s_and_b32 s{KH}, s{WV}, 1")
    A(f"v_lshlrev_b32 v{VL16}, 4, v{LANE}")
    A(f"v_lshrrev_b32 v{HH}, 5, v{LANE}")
    A(f"v_and_b32 v{II}, 31, v{LANE}")
    A(f"v_and_b32 v{L16}, 15, v{LANE}")
    A(f"v_lshrrev_b32 v{GG}, 4, v{LANE}")
    VV, VD = 13, 14
    kn, mm = 20, [22, 23, 112, 113]
    Q = [24 + 4*i for i in range(4)]
    KF = [40 + 4*i for i in range(4)] + [256 + 192 + 4*i for i in range(4)]
    V0 = [56 + 4*i for i in range(4)] + [256 + 208 + 4*i for i in range(4)]
    V1 = [72 + 4*i for i in range(4)] + [256 + 224 + 4*i for i in range(4)]
    P0, P1 = 88, 92
    SB = [96, 112]
    O = [128 + 16*i for i in range(4)]
    NM = [192 + 16*i for i in range(4)]
    A(f"v_lshlrev_b32 v{T1}, 4, v{L16}")
    A(f"v_lshl_add_u32 v{VV}, v{HH}, 8, v{T1}")
    A(f"v_add_u32 v{VV}, {hex(WS_VF - WS_KF)}, v{VV}")
    A(f"s_lshl_b32 s17, s{QB}, 3")
    A(f"s_lshl_b32 s28, s{TH}, 2")
    A("s_add_u32 s17, s17, s28")
    A(f"s_lshl_b32 s18, s{HEAD}, 16")
    A("s_lshl_b32 s34, s17, 10")
    A("s_add_u32 s34, s34, s18")
    A(f"s_lshl_b32 s28, s{KH}, 11")
    A(f"v_xor_b32 v{T2}, s28, v{VL16}")
    A(f"v_xor_b32 v{T1}, 0x800, v{T2}")
    A(f"s_lshl_b32 s29, s{KH}, 15")
    A("s_add_u32 s29, s29, s18")
    A(f"s_add_u32 s29, s29, {hex(WS_KF)}")
    A(f"s_lshl_b32 s30, s{HEAD}, 9")
    A(f"s_add_u32 s30, s30, {hex(WS_KN)}")
    A(f"v_lshlrev_b32 v{T0}, 3, v{LANE}")
    A("s_mov_b32 s32, 0x0000ffff")
    A("s_mov_b32 s33, 0x0000ffff")
    A(f"v_and_b32 v{T3}, 27, v{LANE}")
    A(f"v_cmp_eq_u32 vcc, 16, v{T3}")
    A(f"v_mov_b32 v{T4}, 0x3f803f80")
    A(f"v_cndmask_b32 v{T3}, 0, v{T4}, vcc")
    for q in range(32): A(f"v_mov_b32 v{V0[0]+q}, v{T3}")
    for q in range(32): A(f"v_accvgpr_write_b32 a{208+q}, v{T3}")
    A("s_waitcnt lgkmcnt(0)")
    srd(A, 20, 8, WS_SIZE)
    A(f"buffer_load_dwordx4 {v(Q[0],4)}, v{T2}, s[20:23], s34 offen")
    A(f"buffer_load_dwordx4 {v(Q[1],4)}, v{T2}, s[20:23], s34 offen offset:1024")
    A(f"buffer_load_dwordx4 {v(Q[2],4)}, v{T1}, s[20:23], s34 offen")
    A(f"buffer_load_dwordx4 {v(Q[3],4)}, v{T1}, s[20:23], s34 offen offset:1024")
    A(f"buffer_load_dwordx2 {v(kn,2)}, v{T0}, s[20:23], s30 offen")
    def load_kv(slot, off):
        A(f"buffer_load_dwordx4 {r(KF[slot],4)}, v{VL16}, s[20:23], s29 offen offset:{off}")
        A("s_mov_b64 exec, s[32:33]")
        A(f"buffer_load_dwordx4 {r(V0[slot],4)}, v{VV}, s[20:23], s29 offen offset:{off}")
        A(f"buffer_load_dwordx4 {r(V1[slot],4)}, v{VV}, s[20:23], s29 offen offset:{off+512}")
        A("s_mov_b64 exec, -1")
    for s_ in range(3): load_kv(s_, s_*1024)
    A("s_add_u32 s29, s29, 3072")
    srd(A, 24, 46, S * S * 2)
    for i in range(4):
        A(f"v_add_u32 v{T0}, {4*i}, v{GG}")
        A(f"v_xor_b32 v{T0}, v{T0}, v{L16}")
        A(f"v_lshlrev_b32 v{T0}, 4, v{T0}")
        A(f"v_lshl_add_u32 v{T0}, v{GG}, 12, v{T0}")
        A(f"v_add_u32 v{VD+i}, {i*(16384-1024)}, v{T0}")
    A(f"s_lshl_b32 s38, s{RB}, 18")
    A(f"s_lshl_b32 s28, s{WV}, 10")
    A("s_add_u32 s38, s38, s28")
    A(f"s_lshl_b32 s28, s{WV}, 16")
    A("s_add_u32 s38, s38, s28")
    A("s_add_u32 s38, s38, s31")
    A(f"s_lshl_b32 s39, s{WV}, 14")
    VDW = 19
    A(f"v_lshrrev_b32 v{T0}, 3, v{LANE}")
    A(f"v_lshlrev_b32 v{T0}, 10, v{T0}")
    A(f"v_and_b32 v{T1}, 1, v{GG}")
    A(f"v_lshlrev_b32 v{T1}, 2, v{T1}")
    A(f"v_xor_b32 v{T1}, v{T1}, v{LANE}")
    A(f"v_and_b32 v{T1}, 7, v{T1}")
    A(f"v_lshl_add_u32 v{T0}, v{T1}, 4, v{T0}")
    A(f"s_lshl_b32 s28, s{CB}, 7")
    A(f"s_lshl_b32 s30, s{WV}, 17")
    A("s_add_u32 s28, s28, s30")
    A(f"v_add_u32 v{VDW}, s28, v{T0}")
    srd(A, 56, 6, D * D * 2)
    A(f"s_lshl_b32 s42, s{WV}, 14")
    A(f"s_add_u32 s42, s42, {L_WO}")
    A("s_lshl_b32 s41, s55, 1")
    NPRE = 12
    for t in range(4):
        load_kv(3 + t, t*1024)
    A("s_add_u32 s29, s29, 4096")
    for t in range(4): A(f"v_mov_b32 v{mm[t]}, 0")
    A(f"s_waitcnt vmcnt({9+NPRE})")
    A(f"v_max_f32 v{kn}, v{kn}, v{kn+1}")
    for sh in (8, 4, 2, 1):
        A(f"v_max_f32_dpp v{kn}, v{kn}, v{kn} row_ror:{sh} row_mask:0xf bank_mask:0xf")
    for q in range(4):
        for t in range(4):
            A(f"v_dot2_f32_bf16 v{mm[t]}, v{Q[t]+q}, v{Q[t]+q}, v{mm[t]}")
    A(f"v_readlane_b32 s34, v{kn}, 0")
    A(f"v_readlane_b32 s35, v{kn}, 16")
    A(f"v_readlane_b32 s40, v{kn}, 32")
    A(f"v_readlane_b32 s37, v{kn}, 48")
    A("s_max_u32 s34, s34, s35")
    A("s_max_u32 s40, s40, s37")
    A("s_max_u32 s34, s34, s40")
    for t in range(4):
        A(f"v_mov_b32 v{T0}, v{mm[t]}")
        A(f"v_permlane32_swap_b32 v{mm[t]}, v{T0}")
        A(f"v_add_f32 v{mm[t]}, v{mm[t]}, v{T0}")
        A(f"v_mul_f32 v{mm[t]}, s34, v{mm[t]}")
        A(f"v_sqrt_f32 v{mm[t]}, v{mm[t]}")
    A(f"v_max3_f32 v{T0}, v{mm[0]}, v{mm[1]}, v{mm[2]}")
    A(f"v_max_f32 v{T0}, v{T0}, v{mm[3]}")
    A(f"v_add_f32 v{T1}, v{mm[0]}, v{mm[1]}")
    A(f"v_add_f32 v{T2}, v{mm[2]}, v{mm[3]}")
    A(f"v_add_f32 v{T1}, v{T1}, v{T2}")
    A(f"v_mov_b32 v{T2}, {f32(THRESH)}")
    A(f"v_cmp_nle_f32 vcc, v{T0}, v{T2}")
    A(f"v_cmp_u_f32 s[34:35], v{T1}, v{T1}")
    A("s_or_b64 vcc, vcc, s[34:35]")
    A(f"s_cbranch_vccnz {name}_slow")
    A.label(f"{name}_fast")
    for t in range(4):
        for q in range(16): A(f"v_sub_f32 v{NM[t]+q}, 0, v{mm[t]}")
    VRS = 20
    A(f"v_xor_b32 v{T0}, v{GG}, v{L16}")
    A(f"v_lshlrev_b32 v{T0}, 4, v{T0}")
    A(f"v_lshl_add_u32 v{T0}, v{L16}, 8, v{T0}")
    A(f"v_add_u32 v{VRS}, s39, v{T0}")
    for k_ in range(1, 4): A(f"v_xor_b32 v{VRS+k_}, {64*k_}, v{VRS}")
    A("s_waitcnt vmcnt(18)")
    A(f"v_mfma_f32_32x32x16_bf16 {v(SB[0],16)}, {v(KF[0],4)}, {v(Q[0],4)}, {v(NM[0],16)}")
    A("s_lshr_b32 s35, s2, 3")
    A("s_lshl_b32 s35, s35, 2")
    A(f"s_add_u32 s35, s35, s{WV}")
    stamp(A, 1)
    A("s_nop 7")
    side = {}
    def put(slot, kind, lines, tag=None):
        while slot in side: slot += 1
        side[slot] = (kind, lines, tag)
        return slot
    STEP = SIDE_STEP
    for n in range(16):
        c_, gq = n // 4, n % 4
        for i in range(4):
            l = []
            if i == 0:
                if gq == 0: l.append(f"s_xor_b32 s36, s38, {c_ << 8}")
                l.append(f"s_xor_b32 s37, s36, {gq*65536}")
            l.append(f"s_add_u32 m0, s39, {gq*4096}" if True else "")
            l.append("s_nop 0" if i else "s_nop 0")
            l.append(f"buffer_load_dwordx4 v{VD+i}, s[24:27], s37 offen offset:{i*1024} {WNT} lds")
            put(2 + int((4*n + i) * STEP), "vm", l, ("wsp", n))
    for n in range(12):
        c_, gq = n // 4, n % 4
        for ksl in range(4):
            put(2 + int((4*(n+4) - 5 + ksl) * STEP) - 1, "rd",
                [f"ds_read_b128 {a((4*c_+ksl)*16+4*gq,4)}, v{VRS+ksl} offset:{gq*4096}"], ("wsp", n))
    for i in range(16):
        put(70 + 11*i, "vm", [f"s_xor_b32 s28, s41, {i}", "s_lshl_b32 s30, s28, 10", "s_add_u32 m0, s42, s30", "s_lshl_b32 s28, s28, 13",
                              f"buffer_load_dwordx4 v{VDW}, s[56:59], s28 offen lds"], ("wo", i))
    def touch(slot, pre, lanes, soffs):
        for k_, so in enumerate(soffs):
            put(slot + 14*k_, "vm", (pre if k_ == 0 else []) + [so, f"s_mov_b64 exec, {lanes}",
                f"buffer_load_dword v{T5}, v{T4}, s[88:91], s40 offen", "s_mov_b64 exec, -1"])
    srdl = lambda base, nb: [f"s_mov_b32 s88, s{base}", f"s_mov_b32 s89, s{base+1}", f"s_mov_b32 s90, {hex(nb)}", "s_mov_b32 s91, 0x00020000"]
    touch(90, srdl(44, D*2*FH*2) + [f"s_mul_i32 s54, s35, {4*3584}", "s_and_b32 s34, s2, 1", "s_mul_i32 s34, s34, 896", "s_add_u32 s54, s54, s34",
          f"v_lshrrev_b32 v{T4}, 3, v{LANE}", f"v_mul_u32_u24 v{T4}, 1792, v{T4}", f"v_and_b32 v{T3}, 7, v{LANE}", f"v_lshl_add_u32 v{T4}, v{T3}, 7, v{T4}"],
          "0x7f7f", [f"s_add_u32 s40, s54, {k_*3584}" for k_ in range(4)])
    touch(160, srdl(50, FH*D*2) + ["s_mul_i32 s54, s35, 7168", "s_and_b32 s34, s2, 1", "s_lshl_b32 s34, s34, 9", "s_add_u32 s54, s54, s34",
          f"v_lshrrev_b32 v{T4}, 2, v{LANE}", f"v_and_b32 v{T3}, 3, v{LANE}", f"v_lshlrev_b32 v{T3}, 7, v{T3}", f"v_lshl_add_u32 v{T4}, v{T4}, 10, v{T3}"],
          "0xffff", [f"s_add_u32 s40, s54, {k_*3072}" for k_ in range(2)])
    vm = [("kv", t_) for t_ in range(7) for _ in range(3)]
    def younger(tag):
        idx = max(i for i, x in enumerate(vm) if x == tag)
        return len(vm) - 1 - idx
    state = {"m0": None, "rdwait": set(), "rd_out": False}
    def do_side(slot):
        if slot not in side: return
        kind, lines, tag = side.pop(slot)
        if kind == "rd":
            if tag not in state["rdwait"]:
                assert sum(1 for x in vm if x == tag) == 4
                n = younger(tag)
                assert n <= 63
                if n < state.get("lastwait", (0, 99))[1] + len(vm) - state.get("lastwait", (0, 99))[0]:
                    A(f"s_waitcnt vmcnt({n})")
                state["rdwait"].add(tag)
            state.setdefault("nrd", {})[tag] = state.setdefault("nrd", {}).get(tag, 0) + 1
        if kind == "vm" and tag and tag[0] == "wsp":
            if tag[1] >= 4 and tag not in state["rdwait2"]:
                assert state["nrd"][("wsp", tag[1] - 4)] == 4
                A("s_waitcnt lgkmcnt(0)")
                state["rdwait2"].add(tag)
            m0l = [l for l in lines if "m0" in l][0]
            if state["m0"] == m0l: lines = [l for l in lines if l != m0l and l != "s_nop 0"]
            else:
                lines = [l for l in lines if l != "s_nop 0"]
                lines = [m0l] + [l for l in lines if l != m0l]
            state["m0"] = m0l
        elif any("m0" in l for l in lines): state["m0"] = None
        for l in lines: A(l)
        if kind == "vm": vm.append(tag)
    state["rdwait2"] = set()
    for tile in range(32):
        kt = tile % 8
        for t in range(4):
            u = tile * 4 + t
            S_, Sn = SB[u % 2], SB[(u + 1) % 2]
            nkt, nt = (kt + (t + 1) // 4) % 8, (t + 1) % 4
            pkt, pt = (kt - (1 if t == 0 else 0)) % 8, (t - 1) % 4
            e = lambda i: A(f"v_exp_f32 v{S_+i}, v{S_+i}")
            c = lambda i: A(f"v_cvt_pk_bf16_f32 v{(P0 if i < 8 else P1) + (i % 8)//2}, v{S_+i}, v{S_+i+1}")
            if t == 3 and tile < 31:
                n = younger(("kv", tile + 1))
                A(f"s_waitcnt vmcnt({n})")
                state["lastwait"] = (len(vm), n)
            if u < 127: A(f"v_mfma_f32_32x32x16_bf16 {v(Sn,16)}, {r(KF[nkt],4)}, {v(Q[nt],4)}, {v(NM[nt],16)}")
            e(0); e(1); e(2)
            if u > 0:
                c_o = "0" if False else v(O[pt],16)
                A(f"v_mfma_f32_32x32x16_bf16 {v(O[pt],16)}, {r(V1[pkt],4)}, {v(P1,4)}, {c_o}")
            c(0); e(3); e(4); do_side(2*u); c(2); e(5); e(6); c(4)
            if t == 1 and tile + 7 < 32:
                load_kv((kt - 1) % 8, (tile % 4)*1024); vm += [("kv", tile + 7)] * 3
                if tile % 4 == 3: A("s_add_u32 s29, s29, 4096")
            e(7); e(8); c(6); e(9); e(10)
            A(f"v_mfma_f32_32x32x16_bf16 {v(O[t],16)}, {r(V0[kt],4)}, {v(P0,4)}, {'0' if tile == 0 else v(O[t],16)}")
            c(8); e(11); e(12); do_side(2*u+1); c(10); e(13); e(14); e(15)
            c(12); c(14)
    assert not side, sorted(side)
    def read_chunk3():
        for gq in range(4):
            for ksl in range(4):
                A(f"ds_read_b128 {a((12+ksl)*16+4*gq,4)}, v{VRS+ksl} offset:{gq*4096}")
    A.label(f"{name}_tail")
    A(f"v_mfma_f32_32x32x16_bf16 {v(O[3],16)}, {r(V1[7],4)}, {v(P1,4)}, {v(O[3],16)}")
    stamp(A, 2)
    VXW, VXR = 13, 14
    A(f"s_mul_i32 s34, s{WV}, 7168")
    A(f"s_add_u32 s34, s34, {L_XB}")
    A(f"s_xor_b32 s35, s{WV}, 1")
    A("s_mul_i32 s35, s35, 7168")
    A(f"s_add_u32 s35, s35, {L_XB}")
    A(f"v_add_u32 v{VXW}, s34, v{VL16}")
    A(f"v_add_u32 v{VXR}, s35, v{VL16}")
    A(f"v_mov_b32 v{O[2]+9}, v{O[3]+8}")
    for t in (2, 3):
        A(f"ds_write_b128 v{VXW}, {v(O[t],4)} offset:{(t-2)*2048}")
        A(f"ds_write_b128 v{VXW}, {v(O[t]+4,4)} offset:{(t-2)*2048+1024}")
    A(f"ds_write_b64 v{VXW}, {v(O[2]+8,2)} offset:4096")
    A("s_waitcnt vmcnt(0) lgkmcnt(0)")
    A("s_barrier")
    A(f"ds_read_b64 {v(T4,2)}, v{VXR} offset:4096")
    for t in (0, 1):
        A(f"ds_read_b128 {v(SB[t],4)}, v{VXR} offset:{t*2048}")
        A(f"ds_read_b128 {v(SB[t]+4,4)}, v{VXR} offset:{t*2048+1024}")
    A(f"s_lshl_b32 s34, s{KH}, 1")
    A("s_add_u32 s34, s34, s17")
    A("s_lshl_b32 s36, s34, 6")
    A("s_lshl_b32 s34, s34, 5")
    A(f"s_add_u32 s34, s34, s{HEAD}")
    A("s_lshl_b32 s34, s34, 10")
    A(f"s_add_u32 s34, s34, {hex(WS_OF)}")
    A("s_add_u32 s35, s34, 0x8000")
    A(f"s_lshl_b32 s37, s{HEAD}, 2")
    A("s_add_u32 s36, s36, s37")
    A(f"s_add_u32 s36, s36, {hex(WS_FO)}")
    A("s_waitcnt lgkmcnt(4)")
    for t in (0, 1):
        A(f"v_add_f32 v{T4+t}, v{O[t]+8}, v{T4+t}")
        A(f"v_rcp_f32 v{T4+t}, v{T4+t}")
    for t in (0, 1):
        A(f"s_waitcnt lgkmcnt({2 - 2*t})")
        for q in range(4): A(f"v_pk_add_f32 {v(O[t]+2*q,2)}, {v(O[t]+2*q,2)}, {v(SB[t]+2*q,2)}")
        for q in range(4): A(f"v_pk_mul_f32 {v(O[t]+2*q,2)}, {v(O[t]+2*q,2)}, {v(T4,2)} op_sel:[0,{t}] op_sel_hi:[1,{t}]")
        pk = P0 if t == 0 else P1
        for q in range(4): A(f"v_cvt_pk_bf16_f32 v{pk+q}, v{O[t]+2*q}, v{O[t]+2*q+1}")
        A(f"buffer_store_dwordx4 {v(pk,4)}, v{VL16}, s[20:23], s{34+t} offen sc1")
    read_chunk3()
    VT0, VXO, VWI, XR = 15, 16, 17, 24
    OFR, ACC, WOF = 32, 96, 128
    A(f"s_lshl_b32 s{TL32}, s{RB}, 1")
    A(f"s_add_u32 s{TL32}, s{TL32}, s{TH}")
    A(f"s_lshl_b32 s{TL16}, s{RB}, 2")
    A(f"s_add_u32 s{TL16}, s{TL16}, s{WV}")
    A(f"v_lshrrev_b32 v{T0}, 2, v{L16}")
    A(f"v_lshl_add_u32 v{T0}, v{HH}, 2, v{T0}")
    A(f"v_lshlrev_b32 v{T0}, 7, v{T0}")
    A(f"v_and_b32 v{T1}, 1, v{GG}")
    A(f"v_lshl_add_u32 v{T0}, v{T1}, 5, v{T0}")
    A(f"v_and_b32 v{T1}, 3, v{LANE}")
    A(f"v_lshl_add_u32 v{T0}, v{T1}, 3, v{T0}")
    A(f"v_lshrrev_b32 v{T1}, 3, v{L16}")
    A(f"v_xor_b32 v{T1}, s{KH}, v{T1}")
    A(f"v_lshl_add_u32 v{VT0}, v{T1}, 6, v{T0}")
    A(f"s_lshl_b32 s17, s{KH}, 15")
    A(f"s_add_u32 s17, s17, {L_WO}")
    A(f"v_add_u32 v{T2}, s17, v{VT0}")
    A(f"v_xor_b32 v{T3}, 64, v{T2}")
    def rd_wo(ks):
        for p in range(2):
            for a_ in range(2):
                A(f"ds_read_b64_tr_b16 {v(WOF+8*ks+4*p+2*a_,2)}, v{(T2,T3)[p]} offset:{ks*2048+a_*1024}")
    for ks in range(8): rd_wo(ks)
    flag(A, 36, 0)
    for ks in range(8, 16): rd_wo(ks)
    A(f"s_lshl_b32 s17, s{TL32}, 15")
    A(f"s_lshl_b32 s28, s{CB}, 7")
    A("s_add_u32 s17, s17, s28")
    A(f"s_lshl_b32 s28, s{KH}, 6")
    A("s_add_u32 s17, s17, s28")
    A(f"v_lshlrev_b32 v{T0}, 10, v{II}")
    A(f"v_add_u32 v{VXO}, s17, v{T0}")
    A(f"v_lshl_add_u32 v{T0}, v{HH}, 3, v{VXO}")
    srd(A, 24, 4, S * D * 2)
    for q in range(4):
        A(f"buffer_load_dwordx2 {v(XR+2*q,2)}, v{T0}, s[24:27], 0 offen offset:{q*16}")
    for m in range(7):
        A(f"v_add_u32 v{T0}, {64*m}, v{LANE}")
        A(f"v_mul_u32_u24 v{T1}, 4682, v{T0}")
        A(f"v_lshrrev_b32 v{T1}, 16, v{T1}")
        A(f"v_mul_u32_u24 v{T4}, 14, v{T1}")
        A(f"v_sub_u32 v{T0}, v{T0}, v{T4}")
        A(f"v_mul_u32_u24 v{T1}, 3584, v{T1}")
        A(f"v_lshl_add_u32 v{VWI+m}, v{T0}, 4, v{T1}")
    srd(A, 56, 44, D * 2 * FH * 2)
    A(f"s_mul_i32 s41, s{WV}, {128*3584}")
    A(f"s_mul_i32 s17, s{CB}, 224")
    A("s_add_u32 s41, s41, s17")
    A(f"s_mul_i32 s42, s{WV}, 7168")
    def win_stream(half, grps):
        st = Stream(A)
        for grp in grps:
            for m in range(7):
                l = [f"s_add_u32 m0, s42, {grp*28672 + m*1024}"]
                l.append(f"s_add_u32 s30, s41, {grp*32*3584 + half*1792}" if m == 0 else "s_nop 0")
                l.append(f"buffer_load_dwordx4 v{VWI+m}, s[56:59], s30 offen lds")
                st.add(*l)
        return st
    A("s_waitcnt lgkmcnt(0)")
    A("s_barrier")
    win_stream(1, (0, 1)).flush()
    A(f"s_lshl_b32 s17, s{RB}, 7")
    A(f"s_lshl_b32 s28, s{KH}, 6")
    A("s_add_u32 s17, s17, s28")
    A(f"s_add_u32 s17, s17, {hex(WS_FO)}")
    A(f"v_lshlrev_b32 v{T1}, 2, v{L16}")
    A(f"s_lshl_b32 s34, s{TL32}, 15")
    A(f"s_lshl_b32 s28, s{KH}, 14")
    A("s_add_u32 s34, s34, s28")
    A(f"s_add_u32 s34, s34, {hex(WS_OF)}")
    poll(A, name, "O", [f"buffer_load_dword v{T2}, v{T1}, s[20:23], s17 offen sc1"], [T2])
    stamp(A, 3)
    LA = 10
    def ld_o(ks):
        if ks >= 16: return False
        if ks % 4 == 0 and ks: A("s_add_u32 s34, s34, 4096")
        A(f"buffer_load_dwordx4 {v(OFR+4*ks,4)}, v{VL16}, s[20:23], s34 offen offset:{(ks%4)*1024} sc1")
        return True
    for ks in range(LA): ld_o(ks)
    st = win_stream(1, (2, 3))
    for ks in range(16):
        A(f"s_waitcnt vmcnt({min(16, ks + LA) - ks - 1 + st.n})")
        for p in range(2):
            c_ = "0" if ks == 0 else v(ACC+16*p,16)
            A(f"v_mfma_f32_32x32x16_bf16 {v(ACC+16*p,16)}, {v(WOF+8*ks+4*p,4)}, {v(OFR+4*ks,4)}, {c_}")
        if not ld_o(ks + LA) and ks >= 8: st.emit(1)
    def exchange(src, dst, n4):
        for q in range(n4): A(f"ds_write_b128 v{VXW}, {v(src+4*q,4)} offset:{q*1024}")
        A("s_waitcnt lgkmcnt(0)")
        A("s_barrier")
        for q in range(n4): A(f"ds_read_b128 {v(dst+4*q,4)}, v{VXR} offset:{q*1024}")
    RCV = OFR
    HP = 248
    exchange(ACC + 16, RCV, 4)
    for q in range(8):
        A(f"v_lshlrev_b32 v{T0}, 16, v{XR+q}")
        A(f"v_and_b32 v{T1}, 0xffff0000, v{XR+q}")
        A(f"v_add_f32 v{ACC+2*q}, v{ACC+2*q}, v{T0}")
        A(f"v_add_f32 v{ACC+2*q+1}, v{ACC+2*q+1}, v{T1}")
    A(f"v_and_b32 v{T0}, 1, v{GG}")
    A(f"v_lshlrev_b32 v{T0}, 14, v{T0}")
    A(f"v_lshl_add_u32 v{T0}, v{HH}, 8, v{T0}")
    A(f"v_lshl_add_u32 v{T0}, v{L16}, 4, v{T0}")
    A(f"s_lshl_b32 s17, s{TL32}, 15")
    A(f"s_lshl_b32 s28, s{CB}, 1")
    A(f"s_add_u32 s28, s28, s{KH}")
    A("s_lshl_b32 s29, s28, 10")
    A("s_add_u32 s17, s17, s29")
    A(f"s_add_u32 s17, s17, {hex(WS_HF)}")
    A("s_waitcnt lgkmcnt(0)")
    for q in range(8): A(f"v_pk_add_f32 {v(ACC+2*q,2)}, {v(ACC+2*q,2)}, {v(RCV+2*q,2)}")
    for q in range(8): A(f"v_cvt_pk_bf16_f32 v{HP+q}, v{ACC+2*q}, v{ACC+2*q+1}")
    A(f"buffer_store_dwordx4 {v(HP,4)}, v{T0}, s[20:23], s17 offen sc1")
    A(f"buffer_store_dwordx4 {v(HP+4,4)}, v{T0}, s[20:23], s17 offen offset:512 sc1")
    n0 = st.n
    st.flush()
    SM, SQ = RCV, RCV + 2
    A(f"v_pk_add_f32 {v(SM,2)}, {v(ACC,2)}, {v(ACC+2,2)}")
    A(f"v_pk_mul_f32 {v(SQ,2)}, {v(ACC,2)}, {v(ACC,2)}")
    for q in range(1, 8):
        if q > 1: A(f"v_pk_add_f32 {v(SM,2)}, {v(SM,2)}, {v(ACC+2*q,2)}")
        A(f"v_pk_fma_f32 {v(SQ,2)}, {v(ACC+2*q,2)}, {v(ACC+2*q,2)}, {v(SQ,2)}")
    A(f"v_add_f32 v{SM}, v{SM}, v{SM+1}")
    A(f"v_add_f32 v{SM+1}, v{SQ}, v{SQ+1}")
    for x_ in (SM, SM + 1):
        A(f"v_mov_b32 v{T0}, v{x_}")
        A(f"v_permlane32_swap_b32 v{x_}, v{T0}")
        A(f"v_add_f32 v{x_}, v{x_}, v{T0}")
    A(f"v_and_b32 v{SM+1}, 0x7fffffff, v{SM+1}")
    A(f"v_lshlrev_b32 v{T0}, 3, v{II}")
    A(f"s_lshl_b32 s17, s{TL32}, 12")
    A("s_lshl_b32 s29, s28, 8")
    A("s_add_u32 s17, s17, s29")
    A(f"s_add_u32 s17, s17, {hex(WS_ST3)}")
    A("s_mov_b32 exec_hi, 0")
    A(f"s_waitcnt vmcnt({st.n - n0})")
    A(f"buffer_store_dwordx2 {v(SM,2)}, v{T0}, s[20:23], s17 offen sc1")
    A("s_mov_b64 exec, -1")
    stamp(A, 4)
    VT4, VT5 = 24, 25
    NMU, RS, STG, ONES = 26, 28, 32, 40
    HFR, AC4, CS, Z2V, RING = 44, 108, 164, 192, 220
    NR = 7
    A(f"v_lshrrev_b32 v{T0}, 2, v{L16}")
    A(f"v_lshl_add_u32 v{T0}, v{HH}, 4, v{T0}")
    A(f"v_and_b32 v{T1}, 1, v{GG}")
    A(f"v_lshl_add_u32 v{T0}, v{T1}, 2, v{T0}")
    A(f"v_mul_u32_u24 v{T0}, 224, v{T0}")
    A(f"v_and_b32 v{T1}, 3, v{LANE}")
    A(f"v_lshl_add_u32 v{T0}, v{T1}, 3, v{T0}")
    A(f"s_mul_i32 s17, s{KH}, 14336")
    A(f"v_add_u32 v{VT4}, s17, v{T0}")
    A(f"v_add_u32 v{VT5}, {2*28672}, v{VT4}")
    for q in range(4): A(f"v_mov_b32 v{ONES+q}, 0x3f803f80")
    KORD = [0, 4, 1, 5, 2, 6, 3, 7]
    def rd_win(idx):
        pk, tau = idx // 7, idx % 7
        ks = KORD[pk]; grp = ks & 3
        base = (grp & 1) * 28672 + (ks >> 2) * 7168 + tau * 32
        for a_ in range(2):
            A(f"ds_read_b64_tr_b16 {v(RING+4*(idx%NR)+2*a_,2)}, v{(VT4,VT5)[grp>>1]} offset:{base + a_*1792}")
    def gemm4(lo, hi, tiles, hook=None, first=True):
        AH = NR - 1
        for i in range(lo, min(hi, lo + AH)): rd_win(i)
        for i in range(lo, hi):
            pk, tau = i // 7, i % 7
            if hook: hook(i)
            out = min(hi, i + AH) - (i + 1)
            A(f"s_waitcnt lgkmcnt({2*out})")
            for (ab, bf_) in tiles:
                d_ = ab + 4*tau
                c_ = "0" if (pk == 0 and first) else v(d_,4)
                A(f"v_mfma_f32_16x16x32_bf16 {v(d_,4)}, {v(RING+4*(i%NR),4)}, {bf_(pk)}, {c_}")
            if i + AH < hi: rd_win(i + AH)
    t_ones = (CS, lambda pk: v(ONES,4))
    t_h = [(AC4 + 28*p, (lambda pk, p=p: v(HFR+8*pk+4*p,4))) for p in range(2)]
    A("s_waitcnt vmcnt(1)")
    A("s_barrier")
    gemm4(0, 56, [t_ones])
    exchange(CS, AC4, 7)
    A(f"v_lshlrev_b32 v{T1}, 10, v{GG}")
    A(f"v_lshl_add_u32 v{T1}, v{L16}, 3, v{T1}")
    A(f"s_lshl_b32 s17, s{TL32}, 12")
    A(f"s_lshl_b32 s28, s{KH}, 7")
    A("s_add_u32 s17, s17, s28")
    A(f"s_add_u32 s17, s17, {hex(WS_ST3)}")
    A(f"s_lshl_b32 s34, s{TL32}, 15")
    A(f"s_lshl_b32 s28, s{KH}, 13")
    A("s_add_u32 s34, s34, s28")
    A(f"s_add_u32 s34, s34, {hex(WS_HF)}")
    A("s_add_u32 s35, s34, 4096")
    A(f"s_lshl_b32 s28, s{KH}, 14")
    A(f"v_add_u32 v{T2}, s28, v{VL16}")
    A(f"v_xor_b32 v{T3}, 0x4000, v{T2}")
    A(f"s_mov_b32 s36, {f32(-GB)}")
    A(f"s_mov_b32 s37, {f32(-GB)}")
    A("s_waitcnt lgkmcnt(0)")
    for q in range(14): A(f"v_pk_add_f32 {v(CS+2*q,2)}, {v(CS+2*q,2)}, {v(AC4+2*q,2)}")
    poll(A, name, "A", [f"buffer_load_dwordx2 {v(STG+2*q,2)}, v{T1}, s[20:23], s17 offen offset:{q*256} sc1" for q in range(4)],
         [STG+1, STG+3, STG+5, STG+7])
    stamp(A, 5)
    for pk in range(8):
        ks = KORD[pk]
        for p in range(2):
            A(f"buffer_load_dwordx4 {v(HFR+8*pk+4*p,4)}, v{(T2,T3)[p]}, s[20:23], s{34 + (ks>>2)} offen offset:{(ks%4)*1024} sc1")
    A(f"v_pk_add_f32 {v(STG,2)}, {v(STG,2)}, {v(STG+2,2)}")
    A(f"v_pk_add_f32 {v(STG+4,2)}, {v(STG+4,2)}, {v(STG+6,2)}")
    A(f"v_pk_add_f32 {v(STG,2)}, {v(STG,2)}, {v(STG+4,2)}")
    red_g(A, [STG, STG+1])
    ln_from_sums(A, STG, STG+1, D, NMU, RS)
    A(f"v_mov_b32 v{NMU+1}, v{NMU}")
    A(f"v_mov_b32 v{RS+1}, v{RS}")
    A(f"v_mov_b32 v{T4}, {f32(-GA)}")
    A(f"v_mov_b32 v{T5}, {f32(-GA)}")
    st = win_stream(0, (0, 1, 2, 3))
    def hook_a(i):
        pk, tau = i // 7, i % 7
        if tau == 0: A(f"s_waitcnt vmcnt({14 - 2*pk + st.n})")
        if i == 28: A("s_barrier")
        if i > 28 and i % 2 == 1: st.emit(1)
    gemm4(0, 56, t_h, hook_a)
    exchange(AC4 + 28, AC4 + 28, 7)
    def gelu(dst, st=None):
        E = AC4 + 28
        def blk(f, n):
            for q in range(n): A(f(q))
            if st: st.emit(2)
        A("s_waitcnt lgkmcnt(0)")
        blk(lambda q: f"v_pk_add_f32 {v(AC4+2*q,2)}, {v(AC4+2*q,2)}, {v(E+2*q,2)}", 14)
        blk(lambda q: f"v_pk_fma_f32 {v(AC4+2*q,2)}, {v(CS+2*q,2)}, {v(NMU,2)}, {v(AC4+2*q,2)}", 14)
        blk(lambda q: f"v_pk_mul_f32 {v(AC4+2*q,2)}, {v(AC4+2*q,2)}, {v(RS,2)}", 14)
        blk(lambda q: f"v_pk_mul_f32 {v(E+2*q,2)}, {v(AC4+2*q,2)}, {v(AC4+2*q,2)}", 14)
        blk(lambda q: f"v_pk_fma_f32 {v(E+2*q,2)}, {v(E+2*q,2)}, s[36:37], {v(T4,2)}", 14)
        blk(lambda q: f"v_pk_mul_f32 {v(E+2*q,2)}, {v(E+2*q,2)}, {v(AC4+2*q,2)}", 14)
        blk(lambda q: f"v_exp_f32 v{E+q}, v{E+q}", 28)
        blk(lambda q: f"v_pk_add_f32 {v(E+2*q,2)}, {v(E+2*q,2)}, 1.0 op_sel_hi:[1,0]", 14)
        blk(lambda q: f"v_rcp_f32 v{E+q}, v{E+q}", 28)
        blk(lambda q: f"v_pk_mul_f32 {v(dst+2*q,2)}, {v(E+2*q,2)}, {v(AC4+2*q,2)}", 14)
    gelu(Z2V)
    A(f"v_pk_add_f32 {v(STG,2)}, {v(Z2V,2)}, {v(Z2V+2,2)}")
    A(f"v_pk_mul_f32 {v(STG+2,2)}, {v(Z2V,2)}, {v(Z2V,2)}")
    for q in range(1, 14):
        if q > 1: A(f"v_pk_add_f32 {v(STG,2)}, {v(STG,2)}, {v(Z2V+2*q,2)}")
        A(f"v_pk_fma_f32 {v(STG+2,2)}, {v(Z2V+2*q,2)}, {v(Z2V+2*q,2)}, {v(STG+2,2)}")
    A(f"v_add_f32 v{STG}, v{STG}, v{STG+1}")
    A(f"v_add_f32 v{STG+1}, v{STG+2}, v{STG+3}")
    red_g(A, [STG, STG+1])
    A(f"v_and_b32 v{STG+1}, 0x7fffffff, v{STG+1}")
    A(f"s_lshl_b32 s17, s{TL16}, 10")
    A(f"s_add_u32 s17, s17, {hex(WS_ST4)}")
    A(f"s_lshl_b32 s28, s{CB}, 7")
    A("s_add_u32 s28, s28, s17")
    A(f"v_lshlrev_b32 v{T1}, 3, v{L16}")
    A("s_mov_b32 exec_hi, 0"); A("s_mov_b32 exec_lo, 0xffff")
    A(f"buffer_store_dwordx2 {v(STG,2)}, v{T1}, s[20:23], s28 offen sc1")
    A("s_mov_b64 exec, -1")
    stamp(A, 6)
    assert st.n == 14
    A("s_waitcnt vmcnt(1)")
    A("s_barrier")
    gemm4(0, 28, t_h + [t_ones], lambda i: st.emit(1) if i % 2 == 0 else None)
    assert not st.q
    N2, R2 = STG + 4, STG + 6
    A(f"v_lshl_add_u32 v{T1}, v{GG}, 8, v{T1}")
    poll(A, name, "B", [f"buffer_load_dwordx2 {v(STG+2*q,2)}, v{T1}, s[20:23], s17 offen offset:{q*128} sc1" for q in range(2)],
         [STG+1, STG+3])
    A(f"v_pk_add_f32 {v(STG,2)}, {v(STG,2)}, {v(STG+2,2)}")
    red_g(A, [STG, STG+1])
    ln_from_sums(A, STG, STG+1, FH, N2, R2)
    A(f"v_mul_f32 v{N2}, v{N2}, v{R2}")
    A(f"v_mov_b32 v{R2+1}, v{R2}")
    A(f"v_mov_b32 v{N2+1}, v{N2}")
    for q in range(14): A(f"v_pk_fma_f32 {v(Z2V+2*q,2)}, {v(Z2V+2*q,2)}, {v(R2,2)}, {v(N2,2)}")
    for q in range(14): A(f"v_cvt_pk_bf16_f32 v{RING+q}, v{Z2V+2*q}, v{Z2V+2*q+1}")
    RSB = 264
    A(f"s_add_u32 s28, s42, {L_XB}")
    A(f"v_mul_u32_u24 v{T0}, {RSB}, v{L16}")
    A(f"v_lshl_add_u32 v{T0}, v{GG}, 3, v{T0}")
    A(f"v_add_u32 v{T0}, s28, v{T0}")
    for tau in range(7): A(f"ds_write_b64 v{T0}, {v(RING+2*tau,2)} offset:{tau*32}")
    A(f"v_and_b32 v{T1}, 1, v{GG}")
    A(f"v_lshrrev_b32 v{T2}, 2, v{L16}")
    A(f"v_lshl_add_u32 v{T2}, v{T1}, 3, v{T2}")
    A(f"v_mul_u32_u24 v{T2}, {RSB}, v{T2}")
    A(f"v_lshl_add_u32 v{T2}, v{HH}, 5, v{T2}")
    A(f"v_and_b32 v{T3}, 3, v{LANE}")
    A(f"v_lshl_add_u32 v{T2}, v{T3}, 3, v{T2}")
    A(f"v_add_u32 v{T2}, s28, v{T2}")
    A("s_waitcnt lgkmcnt(0)")
    for u in range(4):
        for a_ in range(2):
            A(f"ds_read_b64_tr_b16 {v(Z2V+4*u+2*a_,2)}, v{T2} offset:{u*64 + a_*4*RSB}")
    A(f"v_lshlrev_b32 v{T0}, 10, v{HH}")
    A(f"v_lshl_add_u32 v{T0}, v{II}, 4, v{T0}")
    A(f"s_lshl_b32 s17, s{CB}, 6")
    A(f"s_add_u32 s17, s17, s{TL32}")
    A("s_mul_i32 s17, s17, 7168")
    A(f"s_lshl_b32 s28, s{KH}, 9")
    A("s_add_u32 s17, s17, s28")
    A(f"s_add_u32 s17, s17, {hex(WS_Z2)}")
    A("s_add_u32 s28, s17, 4096")
    for u in range(4):
        A(f"s_waitcnt lgkmcnt({6-2*u})")
        if u == 3: A("s_mov_b32 exec_hi, 0")
        A(f"buffer_store_dwordx4 {v(Z2V+4*u,4)}, v{T0}, s[20:23], s{17 if u < 2 else 28} offen offset:{(u%2)*2048} sc1")
    A("s_mov_b64 exec, -1")
    A(f"s_lshl_b32 s34, s{CB}, 9")
    A(f"s_lshl_b32 s28, s{TL16}, 2")
    A("s_add_u32 s34, s34, s28")
    A(f"s_add_u32 s34, s34, {hex(WS_FC)}")
    A("s_barrier")
    VDO = VWI
    A(f"v_lshrrev_b32 v{T0}, 3, v{LANE}")
    A(f"v_lshlrev_b32 v{T0}, 10, v{T0}")
    A(f"v_and_b32 v{T1}, 1, v{GG}")
    A(f"v_lshlrev_b32 v{T1}, 2, v{T1}")
    A(f"v_xor_b32 v{T1}, v{T1}, v{LANE}")
    A(f"v_and_b32 v{T1}, 7, v{T1}")
    A(f"v_lshl_add_u32 v{T0}, v{T1}, 4, v{T0}")
    A(f"s_mul_i32 s28, s{TH}, {448*1024}")
    A(f"s_mul_i32 s29, s{KH}, {112*1024}")
    A("s_add_u32 s28, s28, s29")
    A(f"s_lshl_b32 s29, s{CB}, 7")
    A("s_add_u32 s28, s28, s29")
    A(f"v_add_u32 v{VDO}, s28, v{T0}")
    A(f"s_mul_i32 s41, s{WV}, 14336")
    srd(A, 56, 50, FH * D * 2)
    def wout_stream(part):
        st = Stream(A)
        for i in range(14):
            st.add(f"s_add_u32 m0, s41, {part*57344 + i*1024}", f"s_mov_b32 s30, {part*224*1024 + i*8192}",
                   f"buffer_load_dwordx4 v{VDO}, s[56:59], s30 offen lds")
        return st
    st = wout_stream(0)
    def hook_b(i):
        if i == 42: flag(A, 34, st.n)
        if i % 2 == 0: st.emit(1)
    gemm4(28, 56, t_h + [t_ones], hook_b, first=False)
    stamp(A, 7)
    exchange(CS, Z2V, 7)
    A("s_waitcnt lgkmcnt(0)")
    for q in range(14): A(f"v_pk_add_f32 {v(CS+2*q,2)}, {v(CS+2*q,2)}, {v(Z2V+2*q,2)}")
    A("s_barrier")
    exchange(AC4 + 28, AC4 + 28, 7)
    BS = VT4
    srd(A, 24, 48, S * 2)
    A(f"s_lshl_b32 s17, s{TL16}, 5")
    A(f"v_lshlrev_b32 v{T0}, 1, v{L16}")
    A(f"buffer_load_ushort v{BS}, v{T0}, s[24:27], s17 offen")
    gelu(AC4)
    Z1P = 232
    for q in range(14): A(f"v_cvt_pk_bf16_f32 v{Z1P+q}, v{AC4+2*q}, v{AC4+2*q+1}")
    A(f"s_lshl_b32 s17, s{CB}, 9")
    A(f"s_lshl_b32 s28, s{WV}, 7")
    A("s_add_u32 s17, s17, s28")
    A(f"s_add_u32 s17, s17, {hex(WS_FC)}")
    A(f"v_lshlrev_b32 v{T1}, 2, v{II}")
    A(f"s_lshl_b32 s34, s{CB}, 6")
    A(f"s_lshl_b32 s28, s{WV}, 4")
    A("s_add_u32 s34, s34, s28")
    A("s_mul_i32 s34, s34, 7168")
    A(f"s_add_u32 s34, s34, {hex(WS_Z2)}")
    A("s_lshl_b32 s28, s55, 7")
    A(f"v_lshl_add_u32 v{T3}, v{LANE}, 10, s28")
    poll(A, name, "C", [f"buffer_load_dword v{T2}, v{T1}, s[20:23], s17 offen sc1"], [T2])
    stamp(A, 8)
    AC5, ZF = 32, 144
    def ldz(ks, tau):
        if ks >= 16: return
        if tau == 0 and ks % 4 == 0:
            A(f"s_xor_b32 s29, s31, {(ks//4) << 8}")
            A("s_mul_i32 s29, s29, 112")
            A("s_add_u32 s29, s29, s34")
        if tau == 0: A(f"s_add_u32 s28, s29, {(ks%4)*7168}")
        if tau == 4: A("s_add_u32 s28, s28, 4096")
        A(f"buffer_load_dwordx4 {v(ZF+28*(ks%3)+4*tau,4)}, v{VL16}, s[20:23], s28 offen offset:{(tau%4)*1024} sc1")
    for ks in range(3):
        for tau in range(7): ldz(ks, tau)
    NT = 0
    for ks in range(16):
        for tau in range(7):
            issued = min(112, (ks + 3) * 7 + tau)
            A(f"s_waitcnt vmcnt({issued - (ks*7+tau) - 1 + (NT if ks < 3 else 0)})")
            for p in range(4):
                d_ = AC5 + 28*p + 4*tau
                c_ = "0" if ks == 0 else v(d_,4)
                A(f"v_mfma_f32_16x16x32_bf16 {v(d_,4)}, {v(ZF+28*(ks%3)+4*tau,4)}, {a(ks*16+4*p,4)}, {c_}")
            ldz(ks + 3, tau)
    stamp(A, 9)
    for p in range(1, 4):
        A(f"s_xor_b32 s17, s{WV}, {p}")
        A("s_mul_i32 s17, s17, 21504")
        A(f"s_add_u32 s17, s17, {L_RED}")
        A(f"v_add_u32 v{T0+p}, s17, v{VL16}")
    A("s_barrier")
    for p in range(1, 4):
        for q in range(7): A(f"ds_write_b128 v{T0+p}, {v(AC5+28*p+4*q,4)} offset:{(p-1)*7168+q*1024}")
    A(f"s_mul_i32 s17, s{WV}, 21504")
    A(f"s_add_u32 s17, s17, {L_RED}")
    A(f"v_add_u32 v{T0}, s17, v{VL16}")
    A(f"v_lshlrev_b32 v{T4}, 16, v{BS}")
    A(f"v_mov_b32 v{T5}, v{T4}")
    for q in range(14): A(f"v_pk_add_f32 {v(AC5+2*q,2)}, {v(AC5+2*q,2)}, {v(T4,2)}")
    for q in range(14):
        A(f"v_lshlrev_b32 v{ZF+2*q}, 16, v{Z1P+q}")
        A(f"v_and_b32 v{ZF+2*q+1}, 0xffff0000, v{Z1P+q}")
    A("s_waitcnt lgkmcnt(0)")
    A("s_barrier")
    for p in range(1, 4):
        for q in range(7): A(f"ds_read_b128 {v(AC5+28*p+4*q,4)}, v{T0} offset:{(p-1)*7168+q*1024}")
    A(f"v_lshlrev_b32 v{T0}, 9, v{GG}")
    A(f"v_lshl_add_u32 v{T0}, v{L16}, 4, v{T0}")
    A(f"s_mul_i32 s17, s{TL32}, 56")
    A(f"s_mul_i32 s28, s{CB}, 7")
    A("s_add_u32 s17, s17, s28")
    A("s_lshl_b32 s17, s17, 10")
    A(f"s_lshl_b32 s28, s{KH}, 8")
    A("s_add_u32 s17, s17, s28")
    A(f"s_add_u32 s17, s17, {hex(WS_Y)}")
    A("s_add_u32 s28, s17, 4096")
    A(f"v_and_b32 v{T1}, 0x3ff, v{T0}")
    A(f"v_lshl_add_u32 v{T1}, v{HH}, 3, v{T1}")
    for p in range(1, 4):
        A(f"s_waitcnt lgkmcnt({14-7*(p-1)})")
        for q in range(14): A(f"v_pk_add_f32 {v(AC5+2*q,2)}, {v(AC5+2*q,2)}, {v(AC5+28*p+2*q,2)}")
    for q in range(14): A(f"v_pk_mul_f32 {v(AC5+2*q,2)}, {v(AC5+2*q,2)}, {v(ZF+2*q,2)}")
    YP = ZF + 28
    for q in range(14): A(f"v_cvt_pk_bf16_f32 v{YP+q}, v{AC5+2*q}, v{AC5+2*q+1}")
    for u in range(3):
        A(f"buffer_store_dwordx4 {v(YP+4*u,4)}, v{T0}, s[20:23], s{17 if u < 2 else 28} offen offset:{(u%2)*2048} sc1")
    A(f"buffer_store_dwordx2 {v(YP+12,2)}, v{T1}, s[20:23], s28 offen offset:2048 sc1")
    A("s_barrier")
    st = wout_stream(1)
    st.flush()
    A(f"s_lshl_b32 s17, s{TL32}, 8")
    A(f"s_lshr_b32 s28, s{CB}, 2")
    A("s_lshl_b32 s28, s28, 7")
    A("s_add_u32 s17, s17, s28")
    A(f"s_and_b32 s28, s{CB}, 3")
    A("s_lshl_b32 s28, s28, 1")
    A(f"s_add_u32 s28, s28, s{KH}")
    A("s_lshl_b32 s28, s28, 2")
    A("s_add_u32 s17, s17, s28")
    A(f"s_add_u32 s17, s17, {hex(WS_FD)}")
    flag(A, 17, 14)
    stamp(A, 10)
    A(f"s_mul_i32 s17, s{KH}, 28672")
    A(f"v_add_u32 v{T2}, s17, v{VT0}")
    A(f"v_xor_b32 v{T3}, 64, v{T2}")
    A(f"v_add_u32 v{T4}, 57344, v{T2}")
    A(f"v_add_u32 v{T5}, 57344, v{T3}")
    def rd_wout(c):
        for kap in range(7):
            ks = c * 7 + kap
            for p in range(2):
                for a_ in range(2):
                    row = (32*(kap>>1) + 8*(kap&1) + 16*a_ if kap < 6 else 96 + 8*a_)
                    A(f"ds_read_b64_tr_b16 {a(8*ks+4*p+2*a_,2)}, v{(T2,T3,T4,T5)[2*(c>>1)+p]} offset:{(c&1)*14336 + row*128}")
    rd_wout(0); rd_wout(1)
    A("s_waitcnt vmcnt(1)")
    A("s_barrier")
    rd_wout(2); rd_wout(3)
    A(f"s_lshl_b32 s17, s{TL32}, 8")
    A(f"s_lshl_b32 s28, s{KH}, 7")
    A("s_add_u32 s17, s17, s28")
    A(f"s_add_u32 s17, s17, {hex(WS_FD)}")
    A(f"v_and_b32 v{T1}, 7, v{LANE}")
    A(f"v_lshlrev_b32 v{T1}, 2, v{T1}")
    A(f"s_mul_i32 s34, s{TL32}, 56")
    A(f"s_mul_i32 s28, s{KH}, 28")
    A("s_add_u32 s34, s34, s28")
    A("s_lshl_b32 s34, s34, 10")
    A(f"s_add_u32 s34, s34, {hex(WS_Y)}")
    poll(A, name, "D", [f"buffer_load_dword v{VT4}, v{T1}, s[20:23], s17 offen sc1"], [VT4])
    stamp(A, 11)
    YF, AC6, RC6 = 32, 144, 176
    def ld_y(ks):
        if ks >= 28: return
        if ks % 4 == 0 and ks: A("s_add_u32 s34, s34, 4096")
        A(f"buffer_load_dwordx4 {v(YF+4*ks,4)}, v{VL16}, s[20:23], s34 offen offset:{(ks%4)*1024} sc1")
    LA = 12
    for ks in range(LA): ld_y(ks)
    A("s_waitcnt lgkmcnt(0)")
    for ks in range(28):
        A(f"s_waitcnt vmcnt({min(28, ks + LA) - ks - 1})")
        for p in range(2):
            c_ = "0" if ks == 0 else v(AC6+16*p,16)
            A(f"v_mfma_f32_32x32x16_bf16 {v(AC6+16*p,16)}, {a(8*ks+4*p,4)}, {v(YF+4*ks,4)}, {c_}")
        ld_y(ks + LA)
    exchange(AC6 + 16, RC6, 4)
    for q in range(8):
        A(f"v_lshlrev_b32 v{T0}, 16, v{HP+q}")
        A(f"v_and_b32 v{T1}, 0xffff0000, v{HP+q}")
        A(f"v_add_f32 v{AC6+2*q}, v{AC6+2*q}, v{T0}")
        A(f"v_add_f32 v{AC6+2*q+1}, v{AC6+2*q+1}, v{T1}")
    srd(A, 24, 52, S * D * 2)
    A(f"v_lshl_add_u32 v{T0}, v{HH}, 4, v{VXO}")
    A("s_waitcnt lgkmcnt(0)")
    for q in range(8): A(f"v_pk_add_f32 {v(AC6+2*q,2)}, {v(AC6+2*q,2)}, {v(RC6+2*q,2)}")
    for q in range(8): A(f"v_cvt_pk_bf16_f32 v{RC6+q}, v{AC6+2*q}, v{AC6+2*q+1}")
    for e in range(2):
        A(f"v_permlane32_swap_b32 v{RC6+4*e}, v{RC6+4*e+2}")
        A(f"v_permlane32_swap_b32 v{RC6+4*e+1}, v{RC6+4*e+3}")
    A(f"buffer_store_dwordx4 {v(RC6,4)}, v{T0}, s[24:27], 0 offen")
    A(f"buffer_store_dwordx4 {v(RC6+4,4)}, v{T0}, s[24:27], 0 offen offset:32")
    stamp_flush(A, name, 1, 12)
    A.label(f"{name}_end")
    A("s_endpgm")
    A.label(f"{name}_slow")
    A(f"s_add_u32 s40, s18, {hex(WS_KF)}")
    A("s_mov_b32 s35, 64")
    for t in range(4): A(f"v_mov_b32 v{mm[t]}, 0xff800000")
    A.label(f"{name}_mloop")
    A(f"buffer_load_dwordx4 {r(KF[7],4)}, v{VL16}, s[20:23], s40 offen")
    A("s_waitcnt vmcnt(0)")
    for t in range(4):
        A(f"v_mfma_f32_32x32x16_bf16 {v(SB[0],16)}, {r(KF[7],4)}, {v(Q[t],4)}, 0")
        for q in range(8):
            A(f"v_max3_f32 v{mm[t]}, v{SB[0]+2*q}, v{SB[0]+2*q+1}, v{mm[t]}")
    A("s_add_u32 s40, s40, 1024")
    A("s_sub_u32 s35, s35, 1")
    A("s_cmp_lg_u32 s35, 0")
    A(f"s_cbranch_scc1 {name}_mloop")
    for t in range(4):
        A(f"v_mov_b32 v{T0}, v{mm[t]}")
        A(f"v_permlane32_swap_b32 v{mm[t]}, v{T0}")
        A(f"v_max_f32 v{mm[t]}, v{mm[t]}, v{T0}")
    A(f"s_branch {name}_fast")
    return A.finish() + kernel_desc(name, 256, 256), (name, 256, 256, 163840)
```

```python
from asmlib import *

NAME = "sequential_preLN__mha_block__mixer_gmlp__prompt"
KA_X, KA_WQKV, KA_WO, KA_BX, KA_WIN, KA_WSP, KA_BSP, KA_WOUT, KA_OUT, KA_DBG, KA_WS = [8 * i for i in range(11)]
S, D, H, DH, FH = 2048, 512, 32, 16, 896
WS_QF = 0x000000
WS_KF = 0x200000
WS_VF = 0x400000
WS_KN = 0x600000
WS_OF = 0x700000
WS_HF = 0x900000
WS_Z2 = 0xB00000
WS_Z1 = 0xF00000
WS_Y  = 0x1300000
WS_SY = 0x1700000
WS_ST3 = WS_SY
WS_ST4 = WS_SY + 0x40000
WS_FC = WS_SY + 0x60000
WS_FD = WS_SY + 0x64000
WS_FO = WS_SY + 0x68000
SPIN_MAX = 100000
WS_SIZE = 0x2000000

LOG2E = 1.4426950408889634
import struct
def f32(x):
    return "0x%08x" % struct.unpack("<I", struct.pack("<f", x))[0]

def srd(A, d, base, nbytes, off=0):
    if off:
        A(f"s_add_u32 s{d}, s{base}, {hex(off)}")
        A(f"s_addc_u32 s{d+1}, s{base+1}, 0")
    else:
        A(f"s_mov_b32 s{d}, s{base}")
        A(f"s_mov_b32 s{d+1}, s{base+1}")
    A(f"s_mov_b32 s{d+2}, {hex(nbytes)}")
    A(f"s_mov_b32 s{d+3}, 0x00020000")

def kernel_head(A, name):
    A.raw(".text")
    A.raw(f".globl {name}")
    A.raw(".p2align 8")
    A.raw(f".type {name},@function")
    A.label(name)

def kernel_desc(name, vgpr, agpr=0, sgpr=102):
    acc = (vgpr + 3) // 4 * 4
    nfv = acc + agpr if agpr else vgpr
    return f""".section .rodata,"a"
.p2align 6
.amdhsa_kernel {name}
  .amdhsa_next_free_vgpr {nfv}
  .amdhsa_next_free_sgpr {sgpr}
  .amdhsa_accum_offset {acc}
  .amdhsa_group_segment_fixed_size 0
  .amdhsa_kernarg_size 88
  .amdhsa_user_sgpr_count 2
  .amdhsa_user_sgpr_kernarg_segment_ptr 1
  .amdhsa_system_sgpr_workgroup_id_x 1
.end_amdhsa_kernel
"""

class VAlloc:
    def __init__(self, start=0, limit=256):
        self.n = start; self.limit = limit; self.hi = start
    def __call__(self, n=1, align=None):
        al = align or (4 if n >= 4 else (2 if n >= 2 else 1))
        self.n = (self.n + al - 1) // al * al
        x = self.n
        self.n += n
        assert self.n <= self.limit, "out of registers"
        self.hi = max(self.hi, self.n)
        return x

import os
STAMP = int(os.environ.get("STAMP", "0"))
WS_STAMP = 0x1900000
def stamp(A, slot):
    if not STAMP: return
    A("s_memrealtime s[96:97]")
    A("s_memtime s[98:99]")
    A("s_waitcnt lgkmcnt(0)")
    A(f"s_mov_b32 s{60+2*slot}, s96")
    A(f"s_mov_b32 s{61+2*slot}, s98")
def stamp_flush(A, name, kidx, nslots):
    if not STAMP: return
    A("s_mov_b64 exec, -1")
    A("s_waitcnt vmcnt(0)")
    stamp(A, nslots)
    if STAMP == 2:
        A(f"s_load_dwordx2 s[94:95], s[0:1], {KA_DBG}")
        A("v_mov_b32 v3, 0")
        A("v_cmp_eq_u32 vcc, 0, v0")
        A("s_and_b64 exec, exec, vcc")
        A(f"s_cbranch_execz {name}_end")
        A("s_waitcnt lgkmcnt(0)")
        sel = [(0, 0), (8, 1), (nslots, 2)] if kidx == 0 else [(k, 3 + k) for k in range(nslots + 1)]
        for k, w in sel:
            A(f"v_mov_b32 v4, s{60+2*k}")
            A(f"global_atomic_umax v3, v4, s[94:95] offset:{4*w + 512*(1-kidx)}")
        return
    A(f"s_load_dwordx2 s[94:95], s[0:1], {KA_WS}")
    A("s_lshl_b32 s100, s2, 7")
    A(f"s_add_u32 s100, s100, {hex(WS_STAMP + kidx*32768)}")
    A("v_mov_b32 v3, s100")
    A("v_cmp_eq_u32 vcc, 0, v0")
    A("s_and_b64 exec, exec, vcc")
    A(f"s_cbranch_execz {name}_end")
    A("s_waitcnt lgkmcnt(0)")
    for k in range(nslots + 1):
        A(f"v_mov_b32 v4, s{60+2*k}")
        A(f"v_mov_b32 v5, s{61+2*k}")
        A(f"global_store_dwordx2 v3, v[4:5], s[94:95] offset:{8*k}")
```

```python
from common import *
import math
GA = 2 * math.sqrt(2 / math.pi) * LOG2E
GB = GA * 0.044715
THRESH = 40.0
WNT = os.environ.get('WNT', '')
TOUCH = int(os.environ.get('TOUCH', '1'))
SIDE_STEP = float(os.environ.get('SSTEP', '4.6'))

LANE, T0, T1, T2, T3, T4, T5, VL16, HH, II, L16, GG = 1, 2, 3, 4, 5, 6, 7, 8, 9, 10, 11, 12
RB, CB, WV, TH, KH, TL32, TL16 = 10, 11, 14, 15, 16, 19, 43
CHS = 16384
L_WO = 64 * 1024
L_XB = 132 * 1024
L_RED = 56 * 1024
L_X = 56 * 1024

NPIPE = int(os.environ.get("NPIPE", "1"))
PSLEEP = int(os.environ.get("PSLEEP", "3"))
def poll(A, name, tag, loads, nreg, dst, scratch, early=False):
    nl = len(loads(dst))
    def check(base, wait):
        A(f"s_waitcnt vmcnt({wait})")
        cr = [base] if nreg == 1 else [base + i for i in range(1, nreg, 2)]
        acc = cr[0]
        if len(cr) > 1:
            A(f"v_max_u32 v{T0}, v{cr[0]}, v{cr[1]}")
            if len(cr) == 4: A(f"v_max3_u32 v{T0}, v{T0}, v{cr[2]}, v{cr[3]}")
            acc = T0
        A(f"v_cmp_eq_u32 vcc, -1, v{acc}")
    if early:
        check(dst, 0)
        A(f"s_cbranch_vccz {name}_done{tag}")
    A(f"s_mov_b32 s40, {SPIN_MAX}")
    for k in range(NPIPE):
        for l in loads(scratch + k*nreg): A(l)
        if k < NPIPE - 1: A(f"s_sleep {PSLEEP}")
    A.label(f"{name}_poll{tag}")
    for k in range(NPIPE):
        check(scratch + k*nreg, (NPIPE-1)*nl)
        A(f"s_cbranch_vccz {name}_ok{tag}{k}" if nreg > 1 else f"s_cbranch_vccz {name}_done{tag}")
        for l in loads(scratch + k*nreg): A(l)
    A("s_sub_u32 s40, s40, 1")
    A(f"s_cbranch_scc0 {name}_poll{tag}")
    if nreg > 1:
        for k in range(NPIPE):
            A.label(f"{name}_ok{tag}{k}")
            for i in range(nreg): A(f"v_mov_b32 v{dst+i}, v{scratch+k*nreg+i}")
            if k < NPIPE - 1: A(f"s_branch {name}_done{tag}")
    A.label(f"{name}_done{tag}")

def red_g(A, regs):
    for x in regs:
        A(f"v_mov_b32 v{T0}, v{x}")
        A(f"v_permlane32_swap_b32 v{x}, v{T0}")
        A(f"v_add_f32 v{x}, v{x}, v{T0}")
        A(f"v_mov_b32 v{T0}, v{x}")
        A(f"v_permlane16_swap_b32 v{x}, v{T0}")
        A(f"v_add_f32 v{x}, v{x}, v{T0}")

def ln_from_sums(A, sm, sq, n, nmu, rs):
    A(f"v_mul_f32 v{nmu}, {f32(-1.0/n)}, v{sm}")
    A(f"v_mul_f32 v{sq}, {f32(1.0/n)}, v{sq}")
    A(f"v_fma_f32 v{sq}, -v{nmu}, v{nmu}, v{sq}")
    A(f"v_max_f32 v{sq}, 0, v{sq}")
    A(f"v_add_f32 v{sq}, {f32(1e-5)}, v{sq}")
    A(f"v_rsq_f32 v{rs}, v{sq}")

def flag(A, sreg, wait):
    A(f"v_mov_b32 v{T0}, 0")
    A(f"v_mov_b32 v{T1}, 1")
    A("s_mov_b64 exec, 1")
    A(f"s_waitcnt vmcnt({wait})")
    A(f"buffer_store_dword v{T1}, v{T0}, s[20:23], s{sreg} offen sc1")
    A("s_mov_b64 exec, -1")

class Stream:
    def __init__(self, A): self.A = A; self.q = []; self.n = 0
    def add(self, *lines): self.q.append(lines)
    def emit(self, k=1):
        for _ in range(k):
            if self.q:
                for l in self.q.pop(0): self.A(l)
                self.n += 1
    def flush(self): self.emit(len(self.q))

def gen_k2f(name="k2_main_kernel"):
    A = Asm()
    kernel_head(A, name)
    A("s_cmp_ge_u32 s2, 256")
    A(f"s_cbranch_scc1 {name}_end")
    if os.environ.get("BADMAP"):
        A("s_lshr_b32 s3, s2, 5")
        A("s_and_b32 s2, s2, 31")
        A("s_lshl_b32 s2, s2, 3")
        A("s_or_b32 s2, s2, s3")
    stamp(A, 0)
    A(f"s_load_dwordx2 s[8:9], s[0:1], {KA_WS}")
    A(f"s_load_dwordx2 s[4:5], s[0:1], {KA_X}")
    A(f"s_load_dwordx2 s[6:7], s[0:1], {KA_WO}")
    A(f"s_load_dwordx8 s[44:51], s[0:1], {KA_WIN}")
    A(f"s_load_dwordx2 s[52:53], s[0:1], {KA_OUT}")
    A("s_and_b32 s12, s2, 7")
    A("s_lshr_b32 s13, s2, 3")
    A(f"s_lshr_b32 s{RB}, s12, 1")
    A(f"s_lshl_b32 s{RB}, s{RB}, 3")
    A("s_and_b32 s17, s13, 7")
    A("s_mov_b32 s55, s17")
    A(f"s_add_u32 s{RB}, s{RB}, s17")
    A(f"s_and_b32 s{CB}, s12, 1")
    A(f"s_lshl_b32 s{CB}, s{CB}, 2")
    A("s_lshr_b32 s17, s13, 3")
    A(f"s_add_u32 s{CB}, s{CB}, s17")
    A("s_lshl_b32 s31, s17, 8")
    HEAD, QB = 12, 13
    A("s_lshl_b32 s12, s12, 2")
    A("s_and_b32 s17, s13, 3")
    A("s_add_u32 s12, s12, s17")
    A("s_lshr_b32 s13, s2, 5")
    A(f"v_and_b32 v{LANE}, 63, v0")
    A(f"v_lshrrev_b32 v{T0}, 6, v0")
    A(f"v_readfirstlane_b32 s{WV}, v{T0}")
    A(f"s_lshr_b32 s{TH}, s{WV}, 1")
    A(f"s_and_b32 s{KH}, s{WV}, 1")
    A(f"v_lshlrev_b32 v{VL16}, 4, v{LANE}")
    A(f"v_lshrrev_b32 v{HH}, 5, v{LANE}")
    A(f"v_and_b32 v{II}, 31, v{LANE}")
    A(f"v_and_b32 v{L16}, 15, v{LANE}")
    A(f"v_lshrrev_b32 v{GG}, 4, v{LANE}")
    VV, VD = 13, 14
    kn, mm = 20, [22, 23, 112, 113]
    Q = [24 + 4*i for i in range(4)]
    KF = [256 + 192 + 4*i for i in range(4)] + [40 + 4*i for i in range(4)]
    V0 = [256 + 208 + 4*i for i in range(4)] + [56 + 4*i for i in range(4)]
    V1 = [256 + 224 + 4*i for i in range(4)] + [72 + 4*i for i in range(4)]
    P0, P1 = 88, 92
    SB = [96, 112]
    O = [128 + 16*i for i in range(4)]
    NM = [192 + 16*i for i in range(4)]
    A(f"v_lshlrev_b32 v{T1}, 4, v{L16}")
    A(f"v_lshl_add_u32 v{VV}, v{HH}, 8, v{T1}")
    A(f"v_add_u32 v{VV}, {hex(WS_VF - WS_KF)}, v{VV}")
    A(f"s_lshl_b32 s17, s{QB}, 3")
    A(f"s_lshl_b32 s28, s{TH}, 2")
    A("s_add_u32 s17, s17, s28")
    A(f"s_lshl_b32 s18, s{HEAD}, 16")
    A("s_lshl_b32 s34, s17, 10")
    A("s_add_u32 s34, s34, s18")
    A(f"s_lshl_b32 s28, s{KH}, 11")
    A(f"v_xor_b32 v{T2}, s28, v{VL16}")
    A(f"v_xor_b32 v{T1}, 0x800, v{T2}")
    A(f"s_lshl_b32 s29, s{KH}, 15")
    A("s_add_u32 s29, s29, s18")
    A(f"s_add_u32 s29, s29, {hex(WS_KF)}")
    A(f"s_lshl_b32 s30, s{HEAD}, 9")
    A(f"s_add_u32 s30, s30, {hex(WS_KN)}")
    A(f"v_lshlrev_b32 v{T0}, 3, v{LANE}")
    A("s_mov_b32 s32, 0x0000ffff")
    A("s_mov_b32 s33, 0x0000ffff")
    A(f"v_and_b32 v{T3}, 27, v{LANE}")
    A(f"v_cmp_eq_u32 vcc, 16, v{T3}")
    A(f"v_mov_b32 v{T4}, 0x3f803f80")
    A(f"v_cndmask_b32 v{T3}, 0, v{T4}, vcc")
    for q in range(32): A(f"v_mov_b32 v{56+q}, v{T3}")
    for q in range(32): A(f"v_accvgpr_write_b32 a{208+q}, v{T3}")
    A("s_waitcnt lgkmcnt(0)")
    srd(A, 20, 8, WS_SIZE)
    A(f"buffer_load_dwordx4 {v(Q[0],4)}, v{T2}, s[20:23], s34 offen")
    A(f"buffer_load_dwordx4 {v(Q[1],4)}, v{T2}, s[20:23], s34 offen offset:1024")
    A(f"buffer_load_dwordx4 {v(Q[2],4)}, v{T1}, s[20:23], s34 offen")
    A(f"buffer_load_dwordx4 {v(Q[3],4)}, v{T1}, s[20:23], s34 offen offset:1024")
    A(f"buffer_load_dwordx2 {v(kn,2)}, v{T0}, s[20:23], s30 offen")
    def load_kv(slot, off):
        A(f"buffer_load_dwordx4 {r(KF[slot],4)}, v{VL16}, s[20:23], s29 offen offset:{off}")
        A("s_mov_b64 exec, s[32:33]")
        A(f"buffer_load_dwordx4 {r(V0[slot],4)}, v{VV}, s[20:23], s29 offen offset:{off}")
        A(f"buffer_load_dwordx4 {r(V1[slot],4)}, v{VV}, s[20:23], s29 offen offset:{off+512}")
        A("s_mov_b64 exec, -1")
    for s_ in range(3): load_kv(s_, s_*1024)
    A("s_add_u32 s29, s29, 3072")
    srd(A, 24, 46, S * S * 2)
    A(f"v_lshlrev_b32 v{T0}, 4, v{GG}")
    A(f"v_lshl_add_u32 v{VD}, v{L16}, 12, v{T0}")
    A(f"s_lshl_b32 s38, s{RB}, 18")
    A(f"s_lshl_b32 s28, s{WV}, 10")
    A("s_add_u32 s38, s38, s28")
    A(f"s_lshl_b32 s28, s{WV}, 16")
    A("s_add_u32 s38, s38, s28")
    A("s_add_u32 s38, s38, s31")
    A(f"s_lshl_b32 s39, s{WV}, 14")
    VDW = 19
    A(f"v_lshrrev_b32 v{T0}, 3, v{LANE}")
    A(f"v_lshlrev_b32 v{T0}, 10, v{T0}")
    A(f"v_and_b32 v{T1}, 1, v{GG}")
    A(f"v_lshlrev_b32 v{T1}, 2, v{T1}")
    A(f"v_xor_b32 v{T1}, v{T1}, v{LANE}")
    A(f"v_and_b32 v{T1}, 7, v{T1}")
    A(f"v_lshl_add_u32 v{T0}, v{T1}, 4, v{T0}")
    A(f"s_lshl_b32 s28, s{CB}, 7")
    A(f"s_lshl_b32 s30, s{WV}, 17")
    A("s_add_u32 s28, s28, s30")
    A(f"v_add_u32 v{VDW}, s28, v{T0}")
    srd(A, 56, 6, D * D * 2)
    A(f"s_lshl_b32 s42, s{WV}, 14")
    A(f"s_add_u32 s42, s42, {L_WO}")
    A("s_lshl_b32 s41, s55, 1")
    NPRE = 12
    for t in range(4):
        load_kv(3 + t, t*1024)
    A("s_add_u32 s29, s29, 4096")
    for t in range(4): A(f"v_mov_b32 v{mm[t]}, 0")
    A(f"s_waitcnt vmcnt({9+NPRE})")
    A(f"v_max_f32 v{kn}, v{kn}, v{kn+1}")
    for sh in (8, 4, 2, 1):
        A(f"v_max_f32_dpp v{kn}, v{kn}, v{kn} row_ror:{sh} row_mask:0xf bank_mask:0xf")
    for q in range(4):
        for t in range(4):
            A(f"v_dot2_f32_bf16 v{mm[t]}, v{Q[t]+q}, v{Q[t]+q}, v{mm[t]}")
    A(f"v_readlane_b32 s34, v{kn}, 0")
    A(f"v_readlane_b32 s35, v{kn}, 16")
    A(f"v_readlane_b32 s40, v{kn}, 32")
    A(f"v_readlane_b32 s37, v{kn}, 48")
    A("s_max_u32 s34, s34, s35")
    A("s_max_u32 s40, s40, s37")
    A("s_max_u32 s34, s34, s40")
    for t in range(4):
        A(f"v_mov_b32 v{T0}, v{mm[t]}")
        A(f"v_permlane32_swap_b32 v{mm[t]}, v{T0}")
        A(f"v_add_f32 v{mm[t]}, v{mm[t]}, v{T0}")
        A(f"v_mul_f32 v{mm[t]}, s34, v{mm[t]}")
        A(f"v_sqrt_f32 v{mm[t]}, v{mm[t]}")
    A(f"v_max3_f32 v{T0}, v{mm[0]}, v{mm[1]}, v{mm[2]}")
    A(f"v_max_f32 v{T0}, v{T0}, v{mm[3]}")
    A(f"v_add_f32 v{T1}, v{mm[0]}, v{mm[1]}")
    A(f"v_add_f32 v{T2}, v{mm[2]}, v{mm[3]}")
    A(f"v_add_f32 v{T1}, v{T1}, v{T2}")
    A(f"v_mov_b32 v{T2}, {f32(THRESH)}")
    A(f"v_cmp_nle_f32 vcc, v{T0}, v{T2}")
    A(f"v_cmp_u_f32 s[34:35], v{T1}, v{T1}")
    A("s_or_b64 vcc, vcc, s[34:35]")
    A(f"s_cbranch_vccnz {name}_slow")
    A.label(f"{name}_fast")
    for t in range(4):
        for q in range(16): A(f"v_sub_f32 v{NM[t]+q}, 0, v{mm[t]}")
    A("s_waitcnt vmcnt(18)")
    A(f"v_mfma_f32_32x32x16_bf16 {v(SB[0],16)}, {r(KF[0],4)}, {v(Q[0],4)}, {v(NM[0],16)}")
    A("s_lshr_b32 s35, s2, 3")
    A("s_lshl_b32 s35, s35, 2")
    A(f"s_add_u32 s35, s35, s{WV}")
    stamp(A, 1)
    A("s_nop 7")
    side = {}
    def put(slot, kind, lines, tag=None):
        while slot in side: slot += 1
        side[slot] = (kind, lines, tag)
        return slot
    STEP = SIDE_STEP
    for n in range(16):
        c_, gq = n // 4, n % 4
        for ksl in range(4):
            l = [f"s_xor_b32 s37, s38, {(c_ << 8) | (gq << 16)}"] if ksl == 0 else []
            l.append(f"buffer_load_dwordx4 {a((4*c_+ksl)*16+4*gq,4)}, v{VD}, s[24:27], s37 offen offset:{ksl*64} {WNT}")
            k_ = 4*n + ksl
            put(4 + int(k_ * STEP) if n < 12 else 227 + int((k_ - 48) * 1.75), "vm", l, ("wsp", n))
    for i in range(16):
        put(30 + 11*i, "vm", ["s_add_u32 m0, m0, 1024" if i else "s_mov_b32 m0, s42", f"s_mov_b32 s28, {i*8192}",
                              f"buffer_load_dwordx4 v{VDW}, s[56:59], s28 offen lds"], ("wo", i))
    srdl = lambda base, nb: [f"s_mov_b32 s88, s{base}", f"s_mov_b32 s89, s{base+1}", f"s_mov_b32 s90, {hex(nb)}", "s_mov_b32 s91, 0x00020000"]
    put(210, "vm", srdl(4, S*D*2) + [f"v_lshrrev_b32 v{T4}, 3, v{LANE}", f"v_xor_b32 v{T3}, v{T4}, v{LANE}", f"v_and_b32 v{T3}, 7, v{T3}",
         f"v_lshlrev_b32 v{T3}, 4, v{T3}", f"v_lshl_add_u32 v{T4}, v{T4}, 10, v{T3}",
         f"s_lshl_b32 s40, s{RB}, 16", f"s_lshl_b32 s28, s{WV}, 14", "s_add_u32 s40, s40, s28", f"s_lshl_b32 s28, s{CB}, 7", "s_add_u32 s40, s40, s28",
         f"s_lshl_b32 s28, s{WV}, 11", f"s_add_u32 m0, s28, {L_X}", "s_nop 0",
         f"buffer_load_dwordx4 v{T4}, s[88:91], s40 offen lds"], ("x", 0))
    put(216, "vm", ["s_add_u32 m0, m0, 1024", "s_add_u32 s40, s40, 8192", f"buffer_load_dwordx4 v{T4}, s[88:91], s40 offen lds"], ("x", 1))
    def touch(slot, pre, lanes, soffs):
        if not TOUCH: return
        for k_, so in enumerate(soffs):
            put(slot + 14*k_, "vm", (pre if k_ == 0 else []) + [so, f"s_mov_b64 exec, {lanes}",
                f"buffer_load_dword v{T5}, v{T4}, s[88:91], s40 offen", "s_mov_b64 exec, -1"])
    srdl = lambda base, nb: [f"s_mov_b32 s88, s{base}", f"s_mov_b32 s89, s{base+1}", f"s_mov_b32 s90, {hex(nb)}", "s_mov_b32 s91, 0x00020000"]
    touch(90, srdl(44, D*2*FH*2) + [f"s_mul_i32 s54, s35, {4*3584}", "s_and_b32 s34, s2, 1", "s_mul_i32 s34, s34, 896", "s_add_u32 s54, s54, s34",
          f"v_lshrrev_b32 v{T4}, 3, v{LANE}", f"v_mul_u32_u24 v{T4}, 1792, v{T4}", f"v_and_b32 v{T3}, 7, v{LANE}", f"v_lshl_add_u32 v{T4}, v{T3}, 7, v{T4}"],
          "0x7f7f", [f"s_add_u32 s40, s54, {k_*3584}" for k_ in range(4)])
    touch(160, srdl(50, FH*D*2) + ["s_mul_i32 s54, s35, 7168", "s_and_b32 s34, s2, 1", "s_lshl_b32 s34, s34, 9", "s_add_u32 s54, s54, s34",
          f"v_lshrrev_b32 v{T4}, 2, v{LANE}", f"v_and_b32 v{T3}, 3, v{LANE}", f"v_lshlrev_b32 v{T3}, 7, v{T3}", f"v_lshl_add_u32 v{T4}, v{T4}, 10, v{T3}"],
          "0xffff", [f"s_add_u32 s40, s54, {k_*3072}" for k_ in range(2)])
    vm = [("kv", t_) for t_ in range(7) for _ in range(3)]
    def younger(tag):
        idx = max(i for i, x in enumerate(vm) if x == tag)
        return len(vm) - 1 - idx
    state = {"m0": None, "rdwait": set(), "rd_out": False}
    def do_side(slot):
        if slot not in side: return
        kind, lines, tag = side.pop(slot)
        if kind == "rd":
            if tag not in state["rdwait"]:
                assert sum(1 for x in vm if x == tag) == 4
                n = younger(tag)
                assert n <= 63
                if n < state.get("lastwait", (0, 99))[1] + len(vm) - state.get("lastwait", (0, 99))[0]:
                    A(f"s_waitcnt vmcnt({n})")
                state["rdwait"].add(tag)
            state.setdefault("nrd", {})[tag] = state.setdefault("nrd", {}).get(tag, 0) + 1
        skip = os.environ.get("SKIP", "")
        lab = "rd" if kind == "rd" else (tag[0] if tag else "touch")
        if lab in skip.split(","): lines = []
        for l in lines: A(l)
        if kind == "vm": vm.append(tag)
    state["rdwait2"] = set()
    for tile in range(32):
        kt = tile % 8
        for t in range(4):
            u = tile * 4 + t
            S_, Sn = SB[u % 2], SB[(u + 1) % 2]
            nkt, nt = (kt + (t + 1) // 4) % 8, (t + 1) % 4
            pkt, pt = (kt - (1 if t == 0 else 0)) % 8, (t - 1) % 4
            e = lambda i: A(f"v_exp_f32 v{S_+i}, v{S_+i}")
            c = lambda i: A(f"v_cvt_pk_bf16_f32 v{(P0 if i < 8 else P1) + (i % 8)//2}, v{S_+i}, v{S_+i+1}")
            if t == 3 and tile < 31:
                n = younger(("kv", tile + 1))
                A(f"s_waitcnt vmcnt({n})")
                state["lastwait"] = (len(vm), n)
            if u < 127: A(f"v_mfma_f32_32x32x16_bf16 {v(Sn,16)}, {r(KF[nkt],4)}, {v(Q[nt],4)}, {v(NM[nt],16)}")
            e(0); e(1); e(2)
            if u > 0:
                c_o = "0" if False else v(O[pt],16)
                A(f"v_mfma_f32_32x32x16_bf16 {v(O[pt],16)}, {r(V1[pkt],4)}, {v(P1,4)}, {c_o}")
            c(0); e(3); e(4); do_side(2*u); c(2); e(5); e(6); c(4)
            if t == 1 and tile + 7 < 32:
                load_kv((kt - 1) % 8, (tile % 4)*1024); vm += [("kv", tile + 7)] * 3
                if tile % 4 == 3: A("s_add_u32 s29, s29, 4096")
            e(7); e(8); c(6); e(9); e(10)
            A(f"v_mfma_f32_32x32x16_bf16 {v(O[t],16)}, {r(V0[kt],4)}, {v(P0,4)}, {'0' if tile == 0 else v(O[t],16)}")
            c(8); e(11); e(12); do_side(2*u+1); c(10); e(13); e(14); e(15)
            c(12); c(14)
    assert not side, sorted(side)
    def read_chunk3():
        for gq in range(4):
            for ksl in range(4):
                A(f"ds_read_b128 {a((12+ksl)*16+4*gq,4)}, v{VRS+ksl} offset:{gq*4096}")
    A.label(f"{name}_tail")
    A(f"v_mfma_f32_32x32x16_bf16 {v(O[3],16)}, {r(V1[7],4)}, {v(P1,4)}, {v(O[3],16)}")
    stamp(A, 2)
    VXW, VXR = 13, 14
    A(f"s_mul_i32 s34, s{WV}, 7168")
    A(f"s_add_u32 s34, s34, {L_XB}")
    A(f"s_xor_b32 s35, s{WV}, 1")
    A("s_mul_i32 s35, s35, 7168")
    A(f"s_add_u32 s35, s35, {L_XB}")
    A(f"v_add_u32 v{VXW}, s34, v{VL16}")
    A(f"v_add_u32 v{VXR}, s35, v{VL16}")
    A(f"v_mov_b32 v{O[2]+9}, v{O[3]+8}")
    for t in (2, 3):
        A(f"ds_write_b128 v{VXW}, {v(O[t],4)} offset:{(t-2)*2048}")
        A(f"ds_write_b128 v{VXW}, {v(O[t]+4,4)} offset:{(t-2)*2048+1024}")
    A(f"ds_write_b64 v{VXW}, {v(O[2]+8,2)} offset:4096")
    A(f"s_waitcnt vmcnt({younger(('x', 1))}) lgkmcnt(0)")
    A("s_barrier")
    A(f"ds_read_b64 {v(T4,2)}, v{VXR} offset:4096")
    for t in (0, 1):
        A(f"ds_read_b128 {v(SB[t],4)}, v{VXR} offset:{t*2048}")
        A(f"ds_read_b128 {v(SB[t]+4,4)}, v{VXR} offset:{t*2048+1024}")
    A(f"s_lshl_b32 s34, s{KH}, 1")
    A("s_add_u32 s34, s34, s17")
    A("s_lshl_b32 s36, s34, 6")
    A("s_lshl_b32 s34, s34, 5")
    A(f"s_add_u32 s34, s34, s{HEAD}")
    A("s_lshl_b32 s34, s34, 10")
    A(f"s_add_u32 s34, s34, {hex(WS_OF)}")
    A("s_add_u32 s35, s34, 0x8000")
    A(f"s_lshl_b32 s37, s{HEAD}, 2")
    A("s_add_u32 s36, s36, s37")
    A(f"s_add_u32 s36, s36, {hex(WS_FO)}")
    A("s_waitcnt lgkmcnt(4)")
    for t in (0, 1):
        A(f"v_add_f32 v{T4+t}, v{O[t]+8}, v{T4+t}")
        A(f"v_rcp_f32 v{T4+t}, v{T4+t}")
    for t in (0, 1):
        A(f"s_waitcnt lgkmcnt({2 - 2*t})")
        for q in range(4): A(f"v_pk_add_f32 {v(O[t]+2*q,2)}, {v(O[t]+2*q,2)}, {v(SB[t]+2*q,2)}")
        for q in range(4): A(f"v_pk_mul_f32 {v(O[t]+2*q,2)}, {v(O[t]+2*q,2)}, {v(T4,2)} op_sel:[0,{t}] op_sel_hi:[1,{t}]")
        pk = P0 if t == 0 else P1
        for q in range(4): A(f"v_cvt_pk_bf16_f32 v{pk+q}, v{O[t]+2*q}, v{O[t]+2*q+1}")
        A(f"buffer_store_dwordx4 {v(pk,4)}, v{VL16}, s[20:23], s{34+t} offen sc1")
    VT0, VXO, VWI, XR = 15, 16, 17, 24
    OFR, ACC, WOF = 32, 96, 128
    A(f"s_lshl_b32 s{TL32}, s{RB}, 1")
    A(f"s_add_u32 s{TL32}, s{TL32}, s{TH}")
    A(f"s_lshl_b32 s{TL16}, s{RB}, 2")
    A(f"s_add_u32 s{TL16}, s{TL16}, s{WV}")
    A(f"v_lshrrev_b32 v{T0}, 2, v{L16}")
    A(f"v_lshl_add_u32 v{T0}, v{HH}, 2, v{T0}")
    A(f"v_lshlrev_b32 v{T0}, 7, v{T0}")
    A(f"v_and_b32 v{T1}, 1, v{GG}")
    A(f"v_lshl_add_u32 v{T0}, v{T1}, 5, v{T0}")
    A(f"v_and_b32 v{T1}, 3, v{LANE}")
    A(f"v_lshl_add_u32 v{T0}, v{T1}, 3, v{T0}")
    A(f"v_lshrrev_b32 v{T1}, 3, v{L16}")
    A(f"v_xor_b32 v{T1}, s{KH}, v{T1}")
    A(f"v_lshl_add_u32 v{VT0}, v{T1}, 6, v{T0}")
    A(f"s_lshl_b32 s17, s{KH}, 15")
    A(f"s_add_u32 s17, s17, {L_WO}")
    A(f"v_add_u32 v{T2}, s17, v{VT0}")
    A(f"v_xor_b32 v{T3}, 64, v{T2}")
    def rd_wo(ks):
        for p in range(2):
            for a_ in range(2):
                A(f"ds_read_b64_tr_b16 {v(WOF+8*ks+4*p+2*a_,2)}, v{(T2,T3)[p]} offset:{ks*2048+a_*1024}")
    srd(A, 56, 44, D * 2 * FH * 2)
    A(f"s_mul_i32 s41, s{WV}, {32*3584}")
    A(f"s_mul_i32 s17, s{CB}, 224")
    A("s_add_u32 s41, s41, s17")
    A(f"s_mul_i32 s42, s{WV}, 7168")
    def win_stream(half, grps):
        st = Stream(A)
        for grp in grps:
            for m in range(7):
                l = [f"s_add_u32 m0, s42, {grp*28672 + m*1024}"]
                l.append(f"s_add_u32 s30, s41, {grp*128*3584 + half*1792}" if m == 0 else "s_nop 0")
                l.append(f"buffer_load_dwordx4 v{VWI+m}, s[56:59], s30 offen lds")
                st.add(*l)
        return st
    st = win_stream(1, (0, 1))
    for m in range(7):
        A(f"v_add_u32 v{T0}, {64*m}, v{LANE}")
        A(f"v_mul_u32_u24 v{T1}, 4682, v{T0}")
        A(f"v_lshrrev_b32 v{T1}, 16, v{T1}")
        A(f"v_mul_u32_u24 v{T4}, 14, v{T1}")
        A(f"v_sub_u32 v{T0}, v{T0}, v{T4}")
        A(f"v_mul_u32_u24 v{T1}, 3584, v{T1}")
        A(f"v_lshl_add_u32 v{VWI+m}, v{T0}, 4, v{T1}")
        st.emit(1)
        rd_wo(m)
    flag(A, 36, st.n)
    for ks in range(7, 16):
        rd_wo(ks)
        st.emit(1)
    assert not st.q
    A(f"s_lshl_b32 s17, s{TL32}, 15")
    A(f"s_lshl_b32 s28, s{CB}, 7")
    A("s_add_u32 s17, s17, s28")
    A(f"s_lshl_b32 s28, s{KH}, 6")
    A("s_add_u32 s17, s17, s28")
    A(f"v_lshlrev_b32 v{T0}, 10, v{II}")
    A(f"v_add_u32 v{VXO}, s17, v{T0}")
    A(f"v_and_b32 v{T0}, 7, v{LANE}")
    A(f"s_lshl_b32 s28, s{KH}, 2")
    A(f"v_xor_b32 v{T0}, s28, v{T0}")
    A(f"v_lshlrev_b32 v{T0}, 4, v{T0}")
    A(f"v_lshl_add_u32 v{T0}, v{II}, 7, v{T0}")
    A(f"v_lshl_add_u32 v{T0}, v{HH}, 3, v{T0}")
    A(f"s_lshl_b32 s28, s{TH}, 12")
    A(f"v_add_u32 v{T0}, s28, v{T0}")
    for q in range(4):
        A(f"v_xor_b32 v{T1}, {16*q}, v{T0}")
        A(f"ds_read_b64 {v(XR+2*q,2)}, v{T1} offset:{L_X}")
    A(f"s_lshl_b32 s17, s{RB}, 7")
    A(f"s_lshl_b32 s28, s{KH}, 6")
    A("s_add_u32 s17, s17, s28")
    A(f"s_add_u32 s17, s17, {hex(WS_FO)}")
    A(f"v_lshlrev_b32 v{T1}, 2, v{L16}")
    A(f"s_lshl_b32 s34, s{TL32}, 15")
    A(f"s_lshl_b32 s28, s{KH}, 14")
    A("s_add_u32 s34, s34, s28")
    A(f"s_add_u32 s34, s34, {hex(WS_OF)}")
    A("s_waitcnt lgkmcnt(0)")
    A("s_barrier")
    for q in range(8):
        A(f"v_lshlrev_b32 v{ACC+2*q}, 16, v{XR+q}")
        A(f"v_and_b32 v{ACC+2*q+1}, 0xffff0000, v{XR+q}")
    poll(A, name, "O", lambda b_: [f"buffer_load_dword v{b_}, v{T1}, s[20:23], s17 offen sc1"], 1, T2, T2)
    stamp(A, 3)
    LA = 8
    def ld_o(ks):
        if ks >= 16: return False
        if ks % 4 == 0 and ks: A("s_add_u32 s34, s34, 4096")
        A(f"buffer_load_dwordx4 {v(OFR+4*ks,4)}, v{VL16}, s[20:23], s34 offen offset:{(ks%4)*1024} sc1")
        return True
    for ks in range(LA): ld_o(ks)
    st = win_stream(1, (2, 3))

    for ks in range(16):
        A(f"s_waitcnt vmcnt({min(16, ks + LA) - ks - 1 + st.n})")
        for p in range(2):
            c_ = "0" if (ks == 0 and p == 1) else v(ACC+16*p,16)
            A(f"v_mfma_f32_32x32x16_bf16 {v(ACC+16*p,16)}, {v(WOF+8*ks+4*p,4)}, {v(OFR+4*ks,4)}, {c_}")
        if not ld_o(ks + LA): st.emit(1)
    def exchange(src, dst, n4):
        for q in range(n4): A(f"ds_write_b128 v{VXW}, {v(src+4*q,4)} offset:{q*1024}")
        A("s_waitcnt lgkmcnt(0)")
        A("s_barrier")
        for q in range(n4): A(f"ds_read_b128 {v(dst+4*q,4)}, v{VXR} offset:{q*1024}")
    RCV = OFR
    HP = 248
    exchange(ACC + 16, RCV, 4)
    A(f"v_and_b32 v{T0}, 1, v{GG}")
    A(f"v_lshlrev_b32 v{T0}, 14, v{T0}")
    A(f"v_lshl_add_u32 v{T0}, v{HH}, 8, v{T0}")
    A(f"v_lshl_add_u32 v{T0}, v{L16}, 4, v{T0}")
    A(f"s_lshl_b32 s17, s{TL32}, 15")
    A(f"s_lshl_b32 s28, s{CB}, 1")
    A(f"s_add_u32 s28, s28, s{KH}")
    A("s_lshl_b32 s29, s28, 10")
    A("s_add_u32 s17, s17, s29")
    A(f"s_add_u32 s17, s17, {hex(WS_HF)}")
    A("s_waitcnt lgkmcnt(0)")
    for q in range(8): A(f"v_pk_add_f32 {v(ACC+2*q,2)}, {v(ACC+2*q,2)}, {v(RCV+2*q,2)}")
    for q in range(8): A(f"v_cvt_pk_bf16_f32 v{HP+q}, v{ACC+2*q}, v{ACC+2*q+1}")
    A(f"buffer_store_dwordx4 {v(HP,4)}, v{T0}, s[20:23], s17 offen sc1")
    A(f"buffer_store_dwordx4 {v(HP+4,4)}, v{T0}, s[20:23], s17 offen offset:512 sc1")
    n0 = st.n
    st.flush()
    SM, SQ = RCV, RCV + 2
    A(f"v_pk_add_f32 {v(SM,2)}, {v(ACC,2)}, {v(ACC+2,2)}")
    A(f"v_pk_mul_f32 {v(SQ,2)}, {v(ACC,2)}, {v(ACC,2)}")
    for q in range(1, 8):
        if q > 1: A(f"v_pk_add_f32 {v(SM,2)}, {v(SM,2)}, {v(ACC+2*q,2)}")
        A(f"v_pk_fma_f32 {v(SQ,2)}, {v(ACC+2*q,2)}, {v(ACC+2*q,2)}, {v(SQ,2)}")
    A(f"v_add_f32 v{SM}, v{SM}, v{SM+1}")
    A(f"v_add_f32 v{SM+1}, v{SQ}, v{SQ+1}")
    for x_ in (SM, SM + 1):
        A(f"v_mov_b32 v{T0}, v{x_}")
        A(f"v_permlane32_swap_b32 v{x_}, v{T0}")
        A(f"v_add_f32 v{x_}, v{x_}, v{T0}")
    A(f"v_and_b32 v{SM+1}, 0x7fffffff, v{SM+1}")
    A(f"v_lshlrev_b32 v{T0}, 3, v{II}")
    A(f"s_lshl_b32 s17, s{TL32}, 12")
    A("s_lshl_b32 s29, s28, 8")
    A("s_add_u32 s17, s17, s29")
    A(f"s_add_u32 s17, s17, {hex(WS_ST3)}")
    A("s_mov_b32 exec_hi, 0")
    A(f"s_waitcnt vmcnt({st.n - n0})")
    A(f"buffer_store_dwordx2 {v(SM,2)}, v{T0}, s[20:23], s17 offen sc1")
    A("s_mov_b64 exec, -1")
    stamp(A, 4)
    VT4, VT5, VTC, VTD = 24, 25, 30, 31
    NMU, RS = 26, 28
    HFR, AC4, E_, CS, Z2V, RING = 32, 96, 124, 152, 180, 208
    STG, ONES, Z1P = 236, 244, 232
    NR = 7
    RING_X = 19
    A(f"v_lshrrev_b32 v{T0}, 2, v{L16}")
    A(f"v_lshl_add_u32 v{T0}, v{HH}, 4, v{T0}")
    A(f"v_and_b32 v{T1}, 1, v{GG}")
    A(f"v_lshl_add_u32 v{T0}, v{T1}, 2, v{T0}")
    A(f"v_mul_u32_u24 v{T0}, 224, v{T0}")
    A(f"v_and_b32 v{T1}, 3, v{LANE}")
    A(f"v_lshl_add_u32 v{VT4}, v{T1}, 3, v{T0}")
    A(f"v_add_u32 v{VT5}, 57344, v{VT4}")
    A(f"v_add_u32 v{VTC}, s42, v{VT4}")
    A(f"v_add_u32 v{VTD}, s42, v{VT5}")
    for q in range(4): A(f"v_mov_b32 v{ONES+q}, 0x3f803f80")
    def gemm4(frs, hook=None):
        AH = NR - 1
        def rd(i):
            ar, off = frs[i][0], frs[i][1]
            for a_ in range(2):
                A(f"ds_read_b64_tr_b16 {v(RING+4*(i%NR)+2*a_,2)}, v{ar} offset:{off + a_*1792}")
        n = len(frs)
        for i in range(min(n, AH)): rd(i)
        for i in range(n):
            if hook: hook(i)
            if i % 2 == 0: A(f"s_waitcnt lgkmcnt({2*max(0, min(n, i + AH) - (i + 2))})")
            _, _, d_, b_, first = frs[i]
            A(f"v_mfma_f32_16x16x32_bf16 {v(d_,4)}, {v(RING+4*(i%NR),4)}, {b_}, {'0' if first else v(d_,4)}")
            if i + AH < n: rd(i + AH)
    fr_h = lambda lo, hi: [((VT4, VT5)[ks >> 3], (ks & 7)*7168 + tau*32, AC4 + 4*tau, v(HFR+4*ks,4), ks == 0) for ks in range(lo, hi) for tau in range(7)]
    fr_c = lambda lo, hi: [((VTC, VTD)[q >> 1], (q & 1)*28672 + tau*32, CS + 4*tau, v(ONES,4), q == 0) for q in range(lo, hi) for tau in range(7)]
    L_CS = L_XB + 5120
    def cs_allreduce():
        A(f"s_mul_i32 s28, s{WV}, 448")
        A(f"s_add_u32 s28, s28, {L_CS}")
        A(f"v_lshl_add_u32 v{T0}, v{GG}, 4, s28")
        A("s_mov_b32 exec_lo, 0x00010001"); A("s_mov_b32 exec_hi, 0x00010001")
        for tau in range(7): A(f"ds_write_b128 v{T0}, {v(CS+4*tau,4)} offset:{tau*64}")
        A("s_mov_b64 exec, -1")
        A(f"v_min_u32 v{T1}, 27, v{LANE}")
        A(f"v_lshlrev_b32 v{T1}, 4, v{T1}")
        A(f"v_add_u32 v{T2}, {L_CS}, v{T1}")
        A(f"s_add_u32 s28, s42, {L_XB + 4608}")
        A(f"v_add_u32 v{T1}, s28, v{T1}")
        A(f"v_lshl_add_u32 v{T0}, v{GG}, 4, s28")
        A("s_waitcnt lgkmcnt(0)")
        A("s_barrier")
        for w_ in range(4): A(f"ds_read_b128 {v(E_+4*w_,4)}, v{T2} offset:{w_*448}")
        A("s_waitcnt lgkmcnt(0)")
        for q in range(2): A(f"v_pk_add_f32 {v(E_+2*q,2)}, {v(E_+2*q,2)}, {v(E_+4+2*q,2)}")
        for q in range(2): A(f"v_pk_add_f32 {v(E_+8+2*q,2)}, {v(E_+8+2*q,2)}, {v(E_+12+2*q,2)}")
        for q in range(2): A(f"v_pk_add_f32 {v(E_+2*q,2)}, {v(E_+2*q,2)}, {v(E_+8+2*q,2)}")
        A(f"ds_write_b128 v{T1}, {v(E_,4)}")
        A("s_waitcnt lgkmcnt(0)")
        for tau in range(7): A(f"ds_read_b128 {v(CS+4*tau,4)}, v{T0} offset:{tau*64}")
    VPA = T3
    A(f"v_lshlrev_b32 v{VPA}, 10, v{GG}")
    A(f"v_lshl_add_u32 v{VPA}, v{L16}, 3, v{VPA}")
    A(f"s_lshl_b32 s17, s{TL32}, 12")
    A(f"s_lshl_b32 s28, s{KH}, 7")
    A("s_add_u32 s17, s17, s28")
    A(f"s_add_u32 s17, s17, {hex(WS_ST3)}")
    A(f"s_lshl_b32 s34, s{TL16}, 14")
    A(f"s_add_u32 s34, s34, {hex(WS_HF)}")
    A(f"s_mov_b32 s36, {f32(-GB)}")
    A(f"s_mov_b32 s37, {f32(-GB)}")
    A(f"v_mov_b32 v{T4}, {f32(-GA)}")
    A(f"v_mov_b32 v{T5}, {f32(-GA)}")
    A("s_waitcnt vmcnt(1)")
    gemm4(fr_c(0, 4))
    pa = lambda b_: [f"buffer_load_dwordx2 {v(b_+2*q,2)}, v{VPA}, s[20:23], s17 offen offset:{q*256} sc1" for q in range(4)]
    for l in pa(STG): A(l)
    cs_allreduce()
    poll(A, name, "A", pa, 8, STG, Z2V, early=True)
    stamp(A, 5)
    def ld_h(ks):
        if ks % 4 == 0 and ks: A("s_add_u32 s34, s34, 4096")
        A(f"buffer_load_dwordx4 {v(HFR+4*ks,4)}, v{VL16}, s[20:23], s34 offen offset:{(ks%4)*1024} sc1")
    LA = 8
    for ks in range(LA): ld_h(ks)
    A(f"v_pk_add_f32 {v(STG,2)}, {v(STG,2)}, {v(STG+2,2)}")
    A(f"v_pk_add_f32 {v(STG+4,2)}, {v(STG+4,2)}, {v(STG+6,2)}")
    A(f"v_pk_add_f32 {v(STG,2)}, {v(STG,2)}, {v(STG+4,2)}")
    red_g(A, [STG, STG+1])
    ln_from_sums(A, STG, STG+1, D, NMU, RS)
    A(f"v_mov_b32 v{NMU+1}, v{NMU}")
    A(f"v_mov_b32 v{RS+1}, v{RS}")
    A("s_waitcnt lgkmcnt(0)")
    st = win_stream(0, (0, 1, 2, 3))
    hl = {"n": LA}
    def hook_a(i):
        ks, tau = i // 7, i % 7
        if tau == 0: A(f"s_waitcnt vmcnt({hl['n'] - ks - 1 + st.n})")
        if tau in (1, 4) and hl["n"] < 16: ld_h(hl["n"]); hl["n"] += 1
        if i == 56: A("s_barrier")
        if i > 56 and i % 4 == 1: st.emit(1)
    gemm4(fr_h(0, 16), hook_a)
    A("s_barrier")
    def gelu(dst, st=None):
        def blk(f, n):
            for q in range(n): A(f(q))
            if st: st.emit(2)
        blk(lambda q: f"v_pk_fma_f32 {v(AC4+2*q,2)}, {v(CS+2*q,2)}, {v(NMU,2)}, {v(AC4+2*q,2)}", 14)
        blk(lambda q: f"v_pk_mul_f32 {v(AC4+2*q,2)}, {v(AC4+2*q,2)}, {v(RS,2)}", 14)
        blk(lambda q: f"v_pk_mul_f32 {v(E_+2*q,2)}, {v(AC4+2*q,2)}, {v(AC4+2*q,2)}", 14)
        blk(lambda q: f"v_pk_fma_f32 {v(E_+2*q,2)}, {v(E_+2*q,2)}, s[36:37], {v(T4,2)}", 14)
        blk(lambda q: f"v_pk_mul_f32 {v(E_+2*q,2)}, {v(E_+2*q,2)}, {v(AC4+2*q,2)}", 14)
        blk(lambda q: f"v_exp_f32 v{E_+q}, v{E_+q}", 28)
        blk(lambda q: f"v_pk_add_f32 {v(E_+2*q,2)}, {v(E_+2*q,2)}, 1.0 op_sel_hi:[1,0]", 14)
        blk(lambda q: f"v_rcp_f32 v{E_+q}, v{E_+q}", 28)
        blk(lambda q: f"v_pk_mul_f32 {v(dst+2*q,2)}, {v(E_+2*q,2)}, {v(AC4+2*q,2)}", 14)
    gelu(Z2V)
    A(f"v_pk_add_f32 {v(STG,2)}, {v(Z2V,2)}, {v(Z2V+2,2)}")
    A(f"v_pk_mul_f32 {v(STG+2,2)}, {v(Z2V,2)}, {v(Z2V,2)}")
    for q in range(1, 14):
        if q > 1: A(f"v_pk_add_f32 {v(STG,2)}, {v(STG,2)}, {v(Z2V+2*q,2)}")
        A(f"v_pk_fma_f32 {v(STG+2,2)}, {v(Z2V+2*q,2)}, {v(Z2V+2*q,2)}, {v(STG+2,2)}")
    A(f"v_add_f32 v{STG}, v{STG}, v{STG+1}")
    A(f"v_add_f32 v{STG+1}, v{STG+2}, v{STG+3}")
    red_g(A, [STG, STG+1])
    A(f"v_and_b32 v{STG+1}, 0x7fffffff, v{STG+1}")
    A(f"s_lshl_b32 s17, s{TL16}, 10")
    A(f"s_add_u32 s17, s17, {hex(WS_ST4)}")
    A(f"s_lshl_b32 s28, s{CB}, 7")
    A("s_add_u32 s28, s28, s17")
    A(f"v_lshlrev_b32 v{T1}, 3, v{L16}")
    A("s_mov_b32 exec_hi, 0"); A("s_mov_b32 exec_lo, 0xffff")
    A(f"buffer_store_dwordx2 {v(STG,2)}, v{T1}, s[20:23], s28 offen sc1")
    A("s_mov_b64 exec, -1")
    stamp(A, 6)
    assert st.n == 14
    A("s_waitcnt vmcnt(1)")
    A("s_barrier")
    F1 = int(os.environ.get("F1", "8"))
    A(f"v_lshl_add_u32 v{T1}, v{GG}, 8, v{T1}")
    pb = lambda b_: [f"buffer_load_dwordx2 {v(b_+2*q,2)}, v{T1}, s[20:23], s17 offen offset:{q*128} sc1" for q in range(2)]
    PBAT = int(os.environ.get("PBAT", "30"))
    def hook_1(i):
        if i % 2 == 0: st.emit(1)
        if i == PBAT:
            for l in pb(STG): A(l)
    gemm4(fr_h(0, F1), hook_1)
    assert not st.q
    N2, R2 = STG + 4, STG + 6
    poll(A, name, "B", pb, 4, STG, E_ + 16, early=True)
    A(f"v_pk_add_f32 {v(STG,2)}, {v(STG,2)}, {v(STG+2,2)}")
    red_g(A, [STG, STG+1])
    ln_from_sums(A, STG, STG+1, FH, N2, R2)
    A(f"v_mul_f32 v{N2}, v{N2}, v{R2}")
    A(f"v_mov_b32 v{R2+1}, v{R2}")
    A(f"v_mov_b32 v{N2+1}, v{N2}")
    RSB = 264
    A(f"s_add_u32 s28, s42, {L_XB}")
    A(f"v_mul_u32_u24 v{T0}, {RSB}, v{L16}")
    A(f"v_lshl_add_u32 v{T0}, v{GG}, 3, v{T0}")
    A(f"v_add_u32 v{T0}, s28, v{T0}")
    for tau in range(7):
        for q in (2*tau, 2*tau+1): A(f"v_pk_fma_f32 {v(Z2V+2*q,2)}, {v(Z2V+2*q,2)}, {v(R2,2)}, {v(N2,2)}")
        for q in (2*tau, 2*tau+1): A(f"v_cvt_pk_bf16_f32 v{E_+q}, v{Z2V+2*q}, v{Z2V+2*q+1}")
        A(f"ds_write_b64 v{T0}, {v(E_+2*tau,2)} offset:{tau*32}")
    A(f"v_and_b32 v{T1}, 1, v{GG}")
    A(f"v_lshrrev_b32 v{T2}, 2, v{L16}")
    A(f"v_lshl_add_u32 v{T2}, v{T1}, 3, v{T2}")
    A(f"v_mul_u32_u24 v{T2}, {RSB}, v{T2}")
    A(f"v_lshl_add_u32 v{T2}, v{HH}, 5, v{T2}")
    A(f"v_and_b32 v{T3}, 3, v{LANE}")
    A(f"v_lshl_add_u32 v{T2}, v{T3}, 3, v{T2}")
    A(f"v_add_u32 v{T2}, s28, v{T2}")
    A("s_waitcnt lgkmcnt(0)")
    for u in range(4):
        for a_ in range(2):
            A(f"ds_read_b64_tr_b16 {v(Z2V+4*u+2*a_,2)}, v{T2} offset:{u*64 + a_*4*RSB}")
    A(f"v_lshlrev_b32 v{T0}, 10, v{HH}")
    A(f"v_lshl_add_u32 v{T0}, v{II}, 4, v{T0}")
    A(f"s_lshl_b32 s17, s{CB}, 6")
    A(f"s_add_u32 s17, s17, s{TL32}")
    A("s_mul_i32 s17, s17, 7168")
    A(f"s_lshl_b32 s28, s{KH}, 9")
    A("s_add_u32 s17, s17, s28")
    A(f"s_add_u32 s17, s17, {hex(WS_Z2)}")
    A("s_add_u32 s28, s17, 4096")
    for u in range(4):
        A(f"s_waitcnt lgkmcnt({6-2*u})")
        if u == 3: A("s_mov_b32 exec_hi, 0")
        A(f"buffer_store_dwordx4 {v(Z2V+4*u,4)}, v{T0}, s[20:23], s{17 if u < 2 else 28} offen offset:{(u%2)*2048} sc1")
    A("s_mov_b64 exec, -1")
    stamp(A, 7)
    A(f"s_lshl_b32 s34, s{CB}, 9")
    A(f"s_lshl_b32 s28, s{TL16}, 2")
    A("s_add_u32 s34, s34, s28")
    A(f"s_add_u32 s34, s34, {hex(WS_FC)}")
    VDO = VWI
    A(f"v_lshrrev_b32 v{T0}, 3, v{LANE}")
    A(f"v_lshlrev_b32 v{T0}, 10, v{T0}")
    A(f"v_and_b32 v{T1}, 1, v{GG}")
    A(f"v_lshlrev_b32 v{T1}, 2, v{T1}")
    A(f"v_xor_b32 v{T1}, v{T1}, v{LANE}")
    A(f"v_and_b32 v{T1}, 7, v{T1}")
    A(f"v_lshl_add_u32 v{T0}, v{T1}, 4, v{T0}")
    A(f"s_mul_i32 s28, s{TH}, {448*1024}")
    A(f"s_mul_i32 s29, s{KH}, {112*1024}")
    A("s_add_u32 s28, s28, s29")
    A(f"s_lshl_b32 s29, s{CB}, 7")
    A("s_add_u32 s28, s28, s29")
    A(f"v_add_u32 v{VDO}, s28, v{T0}")
    A(f"s_mul_i32 s41, s{WV}, 14336")
    srd(A, 56, 50, FH * D * 2)
    def wout_stream(part):
        st = Stream(A)
        for i in range(14):
            st.add(f"s_add_u32 m0, s41, {part*57344 + i*1024}", f"s_mov_b32 s30, {part*224*1024 + i*8192}",
                   f"buffer_load_dwordx4 v{VDO}, s[56:59], s30 offen lds")
        return st
    st = wout_stream(0)
    BS = VWI + 1
    srd(A, 24, 48, S * 2)
    A(f"s_lshl_b32 s17, s{TL16}, 5")
    A(f"v_lshlrev_b32 v{T0}, 1, v{L16}")
    A(f"buffer_load_ushort v{BS}, v{T0}, s[24:27], s17 offen")
    gemm4(fr_c(0, 2))
    A("s_barrier")
    FLAGAT = int(os.environ.get("FLAGAT", "20"))
    PCAT = int(os.environ.get("PCAT", "60"))
    A(f"s_lshl_b32 s17, s{CB}, 9")
    A(f"s_lshl_b32 s28, s{WV}, 7")
    A("s_add_u32 s17, s17, s28")
    A(f"s_add_u32 s17, s17, {hex(WS_FC)}")
    A(f"v_lshlrev_b32 v{T3}, 2, v{II}")
    pc = lambda b_: [f"buffer_load_dword v{b_}, v{T3}, s[20:23], s17 offen sc1"]
    def hook_2(i):
        if i == FLAGAT: flag(A, 34, 1)
        if i > FLAGAT and i % 2 == 0: st.emit(1)
        if i == PCAT:
            for l in pc(RING_X): A(l)
    gemm4(fr_h(8, 16) + fr_c(2, 4), hook_2)
    assert not st.q
    cs_allreduce()
    A(f"s_lshl_b32 s34, s{CB}, 6")
    A(f"s_lshl_b32 s28, s{WV}, 4")
    A("s_add_u32 s34, s34, s28")
    A("s_mul_i32 s34, s34, 7168")
    A(f"s_add_u32 s34, s34, {hex(WS_Z2)}")
    poll(A, name, "C", pc, 1, RING_X, RING_X + 1, early=True)
    stamp(A, 8)
    AC5, ZF, NZ = 96, 32, 16
    def ldz(i):
        if i >= 112: return
        ks, tau = i // 7, i % 7
        if tau == 0 and ks % 4 == 0:
            A(f"s_xor_b32 s29, s31, {(ks//4) << 8}")
            A("s_mul_i32 s29, s29, 112")
            A("s_add_u32 s29, s29, s34")
        if tau == 0: A(f"s_add_u32 s28, s29, {(ks%4)*7168}")
        if tau == 4: A("s_add_u32 s28, s28, 4096")
        A(f"buffer_load_dwordx4 {v(ZF+4*(i%NZ),4)}, v{VL16}, s[20:23], s28 offen offset:{(tau%4)*1024} sc1")
    class ZS:
        n = 0
        def emit(self, k):
            for _ in range(k):
                if self.n < ZPRE: ldz(self.n); self.n += 1
    ZPRE = int(os.environ.get("ZPRE", "15"))
    zs = ZS()
    A("s_waitcnt lgkmcnt(0)")
    gelu(AC4, zs)
    for q in range(14): A(f"v_cvt_pk_bf16_f32 v{Z1P+q}, v{AC4+2*q}, v{AC4+2*q+1}")
    LA = NZ - 1
    for i in range(zs.n, LA): ldz(i)
    for i in range(112):
        ks, tau = i // 7, i % 7
        A(f"s_waitcnt vmcnt({min(112, i + LA) - i - 1})")
        for p in range(4):
            d_ = AC5 + 28*p + 4*tau
            c_ = "0" if ks == 0 else v(d_,4)
            A(f"v_mfma_f32_16x16x32_bf16 {v(d_,4)}, {v(ZF+4*(i%NZ),4)}, {a(ks*16+4*p,4)}, {c_}")
            if p == 0: ldz(i + LA)
    stamp(A, 9)
    for p in range(1, 4):
        A(f"s_xor_b32 s17, s{WV}, {p}")
        A("s_mul_i32 s17, s17, 21504")
        A(f"s_add_u32 s17, s17, {L_RED}")
        A(f"v_add_u32 v{T0+p}, s17, v{VL16}")
    A("s_barrier")
    for p in range(1, 4):
        for q in range(7): A(f"ds_write_b128 v{T0+p}, {v(AC5+28*p+4*q,4)} offset:{(p-1)*7168+q*1024}")
    A(f"s_mul_i32 s17, s{WV}, 21504")
    A(f"s_add_u32 s17, s17, {L_RED}")
    A(f"v_add_u32 v{T0}, s17, v{VL16}")
    A(f"v_lshlrev_b32 v{T4}, 16, v{BS}")
    A(f"v_mov_b32 v{T5}, v{T4}")
    for q in range(14): A(f"v_pk_add_f32 {v(AC5+2*q,2)}, {v(AC5+2*q,2)}, {v(T4,2)}")
    for q in range(14):
        A(f"v_lshlrev_b32 v{ZF+2*q}, 16, v{Z1P+q}")
        A(f"v_and_b32 v{ZF+2*q+1}, 0xffff0000, v{Z1P+q}")
    A("s_waitcnt lgkmcnt(0)")
    A("s_barrier")
    for p in range(1, 4):
        for q in range(7): A(f"ds_read_b128 {v(AC5+28*p+4*q,4)}, v{T0} offset:{(p-1)*7168+q*1024}")
    A(f"v_lshlrev_b32 v{T0}, 9, v{GG}")
    A(f"v_lshl_add_u32 v{T0}, v{L16}, 4, v{T0}")
    A(f"s_mul_i32 s17, s{TL32}, 56")
    A(f"s_mul_i32 s28, s{CB}, 7")
    A("s_add_u32 s17, s17, s28")
    A("s_lshl_b32 s17, s17, 10")
    A(f"s_lshl_b32 s28, s{KH}, 8")
    A("s_add_u32 s17, s17, s28")
    A(f"s_add_u32 s17, s17, {hex(WS_Y)}")
    A("s_add_u32 s28, s17, 4096")
    A(f"v_and_b32 v{T1}, 0x3ff, v{T0}")
    A(f"v_lshl_add_u32 v{T1}, v{HH}, 3, v{T1}")
    for p in range(1, 4):
        A(f"s_waitcnt lgkmcnt({14-7*(p-1)})")
        for q in range(14): A(f"v_pk_add_f32 {v(AC5+2*q,2)}, {v(AC5+2*q,2)}, {v(AC5+28*p+2*q,2)}")
    for q in range(14): A(f"v_pk_mul_f32 {v(AC5+2*q,2)}, {v(AC5+2*q,2)}, {v(ZF+2*q,2)}")
    YP = ZF + 28
    for q in range(14): A(f"v_cvt_pk_bf16_f32 v{YP+q}, v{AC5+2*q}, v{AC5+2*q+1}")
    for u in range(3):
        A(f"buffer_store_dwordx4 {v(YP+4*u,4)}, v{T0}, s[20:23], s{17 if u < 2 else 28} offen offset:{(u%2)*2048} sc1")
    A(f"buffer_store_dwordx2 {v(YP+12,2)}, v{T1}, s[20:23], s28 offen offset:2048 sc1")
    A(f"s_lshl_b32 s17, s{TL32}, 8")
    A(f"s_lshr_b32 s28, s{CB}, 2")
    A("s_lshl_b32 s28, s28, 7")
    A("s_add_u32 s17, s17, s28")
    A(f"s_and_b32 s28, s{CB}, 3")
    A("s_lshl_b32 s28, s28, 1")
    A(f"s_add_u32 s28, s28, s{KH}")
    A("s_lshl_b32 s28, s28, 2")
    A("s_add_u32 s17, s17, s28")
    A(f"s_add_u32 s17, s17, {hex(WS_FD)}")
    A("s_barrier")
    st = wout_stream(1)
    A(f"s_mul_i32 s28, s{KH}, 28672")
    A(f"v_add_u32 v{T2}, s28, v{VT0}")
    A(f"v_xor_b32 v{T3}, 64, v{T2}")
    A(f"v_add_u32 v{T4}, 57344, v{T2}")
    A(f"v_add_u32 v{T5}, 57344, v{T3}")
    def rd_wout(c, st=None):
        for kap in range(7):
            ks = c * 7 + kap
            for p in range(2):
                for a_ in range(2):
                    row = (32*(kap>>1) + 8*(kap&1) + 16*a_ if kap < 6 else 96 + 8*a_)
                    A(f"ds_read_b64_tr_b16 {a(8*ks+4*p+2*a_,2)}, v{(T2,T3,T4,T5)[2*(c>>1)+p]} offset:{(c&1)*14336 + row*128}")
            if st: st.emit(1)
    rd_wout(0, st)
    flag(A, 17, st.n)
    stamp(A, 10)
    rd_wout(1, st)
    A(f"s_lshl_b32 s17, s{TL32}, 8")
    A(f"s_lshl_b32 s28, s{KH}, 7")
    A("s_add_u32 s17, s17, s28")
    A(f"s_add_u32 s17, s17, {hex(WS_FD)}")
    A(f"v_and_b32 v{T1}, 7, v{LANE}")
    A(f"v_lshlrev_b32 v{T1}, 2, v{T1}")
    A(f"s_mul_i32 s34, s{TL32}, 56")
    A(f"s_mul_i32 s28, s{KH}, 28")
    A("s_add_u32 s34, s34, s28")
    A("s_lshl_b32 s34, s34, 10")
    A(f"s_add_u32 s34, s34, {hex(WS_Y)}")
    YF, AC6, RC6 = 32, 144, 176
    for q in range(8):
        A(f"v_lshlrev_b32 v{AC6+2*q}, 16, v{HP+q}")
        A(f"v_and_b32 v{AC6+2*q+1}, 0xffff0000, v{HP+q}")
    poll(A, name, "D", lambda b_: [f"buffer_load_dword v{b_}, v{T1}, s[20:23], s17 offen sc1"], 1, RING_X, RING_X)
    stamp(A, 11)
    YF, AC6, RC6 = 32, 144, 176
    def ld_y(ks):
        if ks >= 28: return
        if ks % 4 == 0 and ks: A("s_add_u32 s34, s34, 4096")
        A(f"buffer_load_dwordx4 {v(YF+4*ks,4)}, v{VL16}, s[20:23], s34 offen offset:{(ks%4)*1024} sc1")
    LA = 8
    for ks in range(LA): ld_y(ks)
    A("s_barrier")
    rd_wout(2); rd_wout(3)
    A("s_waitcnt lgkmcnt(0)")
    for ks in range(28):
        A(f"s_waitcnt vmcnt({min(28, ks + LA) - ks - 1})")
        for p in range(2):
            c_ = "0" if (ks == 0 and p == 1) else v(AC6+16*p,16)
            A(f"v_mfma_f32_32x32x16_bf16 {v(AC6+16*p,16)}, {a(8*ks+4*p,4)}, {v(YF+4*ks,4)}, {c_}")
        ld_y(ks + LA)
    exchange(AC6 + 16, RC6, 4)
    srd(A, 24, 52, S * D * 2)
    A(f"v_lshl_add_u32 v{T0}, v{HH}, 4, v{VXO}")
    A("s_waitcnt lgkmcnt(0)")
    for q in range(8): A(f"v_pk_add_f32 {v(AC6+2*q,2)}, {v(AC6+2*q,2)}, {v(RC6+2*q,2)}")
    for q in range(8): A(f"v_cvt_pk_bf16_f32 v{RC6+q}, v{AC6+2*q}, v{AC6+2*q+1}")
    for e in range(2):
        A(f"v_permlane32_swap_b32 v{RC6+4*e}, v{RC6+4*e+2}")
        A(f"v_permlane32_swap_b32 v{RC6+4*e+1}, v{RC6+4*e+3}")
    A(f"buffer_store_dwordx4 {v(RC6,4)}, v{T0}, s[24:27], 0 offen")
    A(f"buffer_store_dwordx4 {v(RC6+4,4)}, v{T0}, s[24:27], 0 offen offset:32")
    stamp_flush(A, name, 1, 12)
    A.label(f"{name}_end")
    A("s_endpgm")
    A.label(f"{name}_slow")
    A(f"s_add_u32 s40, s18, {hex(WS_KF)}")
    A("s_mov_b32 s35, 64")
    for t in range(4): A(f"v_mov_b32 v{mm[t]}, 0xff800000")
    A.label(f"{name}_mloop")
    A(f"buffer_load_dwordx4 {r(KF[7],4)}, v{VL16}, s[20:23], s40 offen")
    A("s_waitcnt vmcnt(0)")
    for t in range(4):
        A(f"v_mfma_f32_32x32x16_bf16 {v(SB[0],16)}, {r(KF[7],4)}, {v(Q[t],4)}, 0")
        for q in range(8):
            A(f"v_max3_f32 v{mm[t]}, v{SB[0]+2*q}, v{SB[0]+2*q+1}, v{mm[t]}")
    A("s_add_u32 s40, s40, 1024")
    A("s_sub_u32 s35, s35, 1")
    A("s_cmp_lg_u32 s35, 0")
    A(f"s_cbranch_scc1 {name}_mloop")
    for t in range(4):
        A(f"v_mov_b32 v{T0}, v{mm[t]}")
        A(f"v_permlane32_swap_b32 v{mm[t]}, v{T0}")
        A(f"v_max_f32 v{mm[t]}, v{mm[t]}, v{T0}")
    A(f"s_branch {name}_fast")
    return A.finish() + kernel_desc(name, 256, 256), (name, 256, 256, 163840)
```

```python
from common import *
TLBW = int(os.environ.get('TLBW', '0'))
NT = os.environ.get('K1NT', '')
CODEPF = int(os.environ.get('CODEPF', '1'))
DSTART = int(os.environ.get('K1DS', '4'))

def gen_k1(name="k1_qkv_kernel"):
    A = Asm()
    kernel_head(A, name)
    V = VAlloc(1)
    A("s_cmp_ge_u32 s2, 256")
    A(f"s_cbranch_scc1 {name}_end")
    if os.environ.get("BADMAP"):
        A("s_lshr_b32 s3, s2, 5")
        A("s_and_b32 s2, s2, 31")
        A("s_lshl_b32 s2, s2, 3")
        A("s_or_b32 s2, s2, s3")
    stamp(A, 0)
    A(f"s_load_dwordx4 s[4:7], s[0:1], {KA_X}")
    A(f"s_load_dwordx2 s[8:9], s[0:1], {KA_WS}")
    if TLBW:
        A(f"s_load_dwordx2 s[32:33], s[0:1], {KA_WO}")
        A(f"s_load_dwordx8 s[48:55], s[0:1], {KA_WIN}")
        A(f"s_load_dwordx2 s[40:41], s[0:1], {KA_OUT}")
    A("s_and_b32 s10, s2, 7")
    A("s_lshr_b32 s11, s2, 3")
    A("s_lshr_b32 s12, s10, 1")
    A("s_lshl_b32 s12, s12, 3")
    A("s_and_b32 s28, s11, 7")
    A("s_add_u32 s12, s12, s28")
    A("s_and_b32 s13, s10, 1")
    A("s_lshl_b32 s13, s13, 2")
    A("s_lshr_b32 s14, s11, 3")
    A("s_add_u32 s13, s13, s14")
    A("s_lshl_b32 s14, s14, 1")
    A("s_xor_b32 s28, s28, s14")
    lane, t0, t1, t2 = V(), V(), V(), V()
    A(f"v_and_b32 v{lane}, 63, v0")
    A(f"v_lshrrev_b32 v{t0}, 6, v0")
    A(f"v_readfirstlane_b32 s14, v{t0}")
    A("s_and_b32 s15, s14, 1")
    A("s_lshr_b32 s16, s14, 1")
    vx, vw = V(), V()
    A("s_lshl_b32 s18, s12, 6")
    A("s_lshl_b32 s19, s14, 4")
    A("s_add_u32 s18, s18, s19")
    A(f"v_lshrrev_b32 v{t0}, 3, v{lane}")
    A(f"v_add_u32 v{t1}, s18, v{t0}")
    A(f"v_lshlrev_b32 v{t1}, 10, v{t1}")
    A(f"v_and_b32 v{t2}, 7, v{lane}")
    A(f"v_lshl_add_u32 v{vx}, v{t2}, 4, v{t1}")
    A(f"v_add_u32 v{t1}, s19, v{t0}")
    A(f"v_mul_u32_u24 v{t1}, 3072, v{t1}")
    A(f"v_bfe_u32 v{t0}, v{lane}, 4, 1")
    A(f"v_lshlrev_b32 v{t0}, 2, v{t0}")
    A(f"v_xor_b32 v{vw}, v{t0}, v{t2}")
    A(f"v_lshl_add_u32 v{vw}, v{vw}, 4, v{t1}")
    A("s_lshl_b32 s19, s13, 7")
    A(f"v_add_u32 v{vw}, s19, v{vw}")
    A("s_mul_i32 s17, s14, 6144")
    dummy, vt = V(), V()
    A("s_lshl_b32 s19, s11, 2")
    A("s_add_u32 s19, s19, s14")
    A(f"s_mul_i32 s19, s19, {4*3072}")
    A("s_and_b32 s18, s10, 1")
    A("s_lshl_b32 s18, s18, 9")
    A("s_add_u32 s19, s19, s18")
    A(f"v_lshrrev_b32 v{t0}, 2, v{lane}")
    A(f"v_and_b32 v{t1}, 3, v{lane}")
    A(f"v_lshlrev_b32 v{t1}, 7, v{t1}")
    A(f"v_lshl_add_u32 v{t0}, v{t0}, 10, v{t1}")
    A(f"v_add_u32 v{vt}, s19, v{t0}")
    X = V(128)
    A("s_waitcnt lgkmcnt(0)")
    stamp(A, 1)
    srd(A, 20, 4, S * D * 2)
    srd(A, 24, 6, D * 3 * D * 2)
    XR = lambda s_, u: X + 64 + 8*s_ + 4*u
    for s_ in range(8):
        A(f"s_xor_b32 s30, s28, {s_}")
        A("s_lshl_b32 s30, s30, 7")
        A("s_add_u32 s31, s30, 0x2000")
        A(f"buffer_load_dwordx4 {v(XR(s_,0),4)}, v{vx}, s[20:23], s30 offen {NT}")
        A(f"buffer_load_dwordx4 {v(XR(s_,1),4)}, v{vx}, s[20:23], s31 offen {NT}")
    A("s_mov_b32 exec_hi, 0xffff")
    A(f"buffer_load_dword v{dummy}, v{vt}, s[24:27], 0 offen {NT}")
    A("s_mov_b64 exec, -1")
    stamp(A, 2)
    SLOT = [65536 + 24576*(i%4) for i in range(8)]
    def dma_stage(j):
        out = []
        for c in range(6):
            seg, u = c // 2, c % 2
            l = [f"s_add_u32 m0, s17, {SLOT[j] + c*1024}"]
            if c == 0:
                l = [f"s_xor_b32 s29, s28, {j}", f"s_mul_i32 s29, s29, {64*3072}"] + l
            l.append(f"s_add_u32 s30, s29, {u*8*3072 + seg*1024}")
            l.append(f"buffer_load_dwordx4 v{vw}, s[24:27], s30 offen lds")
            out.append(l)
        return out
    NEARLY = 0
    for j in range(NEARLY):
        for l in dma_stage(j):
            for x_ in l: A(x_)
    pend = [l for j in range(NEARLY, 4) for l in dma_stage(j)]
    nd = 1
    stamp(A, 3)
    st = [V() for _ in range(4)]
    for x_ in st: A(f"v_mov_b32 v{x_}, 0")
    A("s_mov_b32 s34, 0x3f803f80")
    for s_ in range(8):
        A(f"s_waitcnt vmcnt({14 - 2*s_ + nd})")
        if s_ == 0: stamp(A, 4)
        if s_ == 7: stamp(A, 5)
        for q in range(4):
            for u in range(2):
                A(f"v_dot2_f32_bf16 v{st[2*u]}, v{XR(s_,u)+q}, s34, v{st[2*u]}")
                A(f"v_dot2_f32_bf16 v{st[2*u+1]}, v{XR(s_,u)+q}, v{XR(s_,u)+q}, v{st[2*u+1]}")
    for mod in ("quad_perm:[1,0,3,2]", "quad_perm:[2,3,0,1]", "row_half_mirror"):
        for x_ in st:
            A(f"v_add_f32_dpp v{x_}, v{x_}, v{x_} {mod} row_mask:0xf bank_mask:0xf")
    rs = [V(2), V(2)]; nm = [V(2), V(2)]
    for u in range(2):
        A(f"v_mul_f32 v{nm[u]}, {f32(-1.0/D)}, v{st[2*u]}")
        A(f"v_mul_f32 v{st[2*u+1]}, {f32(1.0/D)}, v{st[2*u+1]}")
        A(f"v_fma_f32 v{st[2*u+1]}, -v{nm[u]}, v{nm[u]}, v{st[2*u+1]}")
        A(f"v_max_f32 v{st[2*u+1]}, 0, v{st[2*u+1]}")
        A(f"v_add_f32 v{st[2*u+1]}, {f32(1e-5)}, v{st[2*u+1]}")
        A(f"v_rsq_f32 v{rs[u]}, v{st[2*u+1]}")
    for u in range(2):
        A(f"v_mul_f32 v{nm[u]}, v{nm[u]}, v{rs[u]}")
        A(f"v_mov_b32 v{rs[u]+1}, v{rs[u]}")
        A(f"v_mov_b32 v{nm[u]+1}, v{nm[u]}")
    stamp(A, 6)
    aw = [V(), V()]
    A(f"v_lshrrev_b32 v{t0}, 4, v{lane}")
    A(f"v_xor_b32 v{t0}, v{t0}, v{t2}")
    A(f"v_lshrrev_b32 v{t1}, 3, v{lane}")
    A(f"v_lshlrev_b32 v{t1}, 7, v{t1}")
    A(f"v_lshl_add_u32 v{t0}, v{t0}, 4, v{t1}")
    A("s_lshl_b32 s19, s14, 11")
    A(f"v_add_u32 v{aw[0]}, s19, v{t0}")
    A(f"v_xor_b32 v{aw[1]}, 0x440, v{aw[0]}")
    tp = [V(8), V(8)]
    k = 0
    for s_ in range(8):
        for u in range(2):
            r_, t_ = XR(s_, u), tp[k % 2]
            for q in range(4):
                A(f"v_lshlrev_b32 v{t_+2*q}, 16, v{r_+q}")
                A(f"v_and_b32 v{t_+2*q+1}, 0xffff0000, v{r_+q}")
            for q in range(4): A(f"v_pk_fma_f32 {v(t_+2*q,2)}, {v(t_+2*q,2)}, {v(rs[u],2)}, {v(nm[u],2)}")
            for q in range(4): A(f"v_cvt_pk_bf16_f32 v{r_+q}, v{t_+2*q}, v{t_+2*q+1}")
            A(f"ds_write_b128 v{aw[u]}, {v(r_,4)} offset:{s_*8192}")
            if k >= DSTART:
                for _ in range(2 if k >= 16 - max(0, 12 - (16 - DSTART)) else 1):
                    for x_ in pend.pop(0): A(x_)
                    nd += 1
            k += 1
    npre = nd - 1
    stamp(A, 7)
    hh, ii, l16 = V(), V(), V()
    A(f"v_lshrrev_b32 v{hh}, 5, v{lane}")
    A(f"v_and_b32 v{ii}, 31, v{lane}")
    A(f"v_and_b32 v{l16}, 15, v{lane}")
    axr = [V() for _ in range(4)]
    A("s_lshl_b32 s19, s15, 12")
    A(f"v_lshl_add_u32 v{t0}, v{ii}, 7, s19")
    A(f"v_lshrrev_b32 v{t1}, 1, v{l16}")
    A(f"v_xor_b32 v{t1}, v{t1}, v{hh}")
    A(f"v_lshl_add_u32 v{axr[0]}, v{t1}, 4, v{t0}")
    for s_ in range(1, 4): A(f"v_xor_b32 v{axr[s_]}, {32*s_}, v{axr[0]}")
    awr = [V() for _ in range(3)]
    A(f"v_lshrrev_b32 v{t0}, 2, v{l16}")
    A(f"v_lshl_add_u32 v{t0}, v{hh}, 3, v{t0}")
    A(f"v_lshlrev_b32 v{t0}, 7, v{t0}")
    A(f"v_lshrrev_b32 v{t1}, 4, v{ii}")
    A(f"v_lshl_add_u32 v{t0}, v{t1}, 5, v{t0}")
    A(f"v_and_b32 v{t1}, 3, v{lane}")
    A(f"v_lshl_add_u32 v{t0}, v{t1}, 3, v{t0}")
    A(f"v_lshrrev_b32 v{t1}, 3, v{l16}")
    A(f"v_xor_b32 v{t1}, s16, v{t1}")
    A(f"v_lshl_add_u32 v{awr[0]}, v{t1}, 6, v{t0}")
    A(f"v_add_u32 v{awr[1]}, 0x10000, v{awr[0]}")
    A(f"v_add_u32 v{awr[2]}, 0x20000, v{awr[0]}")
    acc = [V(16) for _ in range(3)]
    wf = [[V(4) for _ in range(3)] for _ in range(2)]
    A(f"s_waitcnt vmcnt({npre - 6}) lgkmcnt(0)")
    A("s_barrier")
    stamp(A, 8)
    def rd_w(k, seg):
        j, s_ = k // 4, k % 4
        base = SLOT[j] + s_ * 6144 + seg * 2048
        for a_ in range(2):
            o = base + 512 * a_
            A(f"ds_read_b64_tr_b16 {v(wf[k%2][seg]+2*a_,2)}, v{awr[o>>16]} offset:{o & 0xffff}")
    def rd_x(k): A(f"ds_read_b128 {v(X+4*(k%2),4)}, v{axr[k%4]} offset:{(k//4)*8192}")
    rd_x(0)
    for g in range(3): rd_w(0, g)
    tags = [i // 6 for i in range(npre)]
    pend = [((npre + i) // 6, l) for i, l in enumerate(pend)]
    def emit(n):
        for _ in range(n):
            if pend:
                tag, l = pend.pop(0)
                for x_ in l: A(x_)
                tags.append(tag)
    def wait_stage(j):
        idx = max(i for i, t in enumerate(tags) if t == j)
        assert sum(1 for t in tags if t == j) == 6
        return len(tags) - 1 - idx
    for k in range(32):
        j, s_ = k // 4, k % 4
        b = k % 2
        last = k == 31
        c_ = (lambda g: "0" if k == 0 else v(acc[g], 16))
        if k == 16: stamp(A, 10)
        if s_ == 3 and not last:
            A(f"s_waitcnt vmcnt({wait_stage(j+1)}) lgkmcnt(0)")
            A("s_barrier")
            if j < 4: pend += [(4 + j, l) for l in dma_stage(4 + j)]
            if j == 4 and TLBW:
                pre = ["s_lshl_b32 s18, s11, 2", "s_add_u32 s18, s18, s14", "s_lshl_b32 s19, s18, 16", "s_lshl_b32 s18, s18, 18", f"v_lshlrev_b32 v{vt}, 16, v{lane}"]
                for base, nb, so, ex in ((8, WS_SIZE, 18, 15), (50, S*S*2, 19, 1), (48, D*2*FH*2, 19, 1), (54, FH*D*2, 19, 1), (32, D*D*2, 19, 1), (40, S*D*2, 19, 1), (52, S*2, 19, 1)):
                    pend.append((9, pre + [f"s_mov_b32 s44, s{base}", f"s_mov_b32 s45, s{base+1}", f"s_mov_b32 s46, {hex(nb)}", "s_mov_b32 s47, 0x00020000",
                                     f"s_mov_b64 exec, {ex}", f"buffer_load_dword v{dummy}, v{vt}, s[44:47], s{so} offen", "s_mov_b64 exec, -1"]))
                    pre = []
            if j == 3 and CODEPF:
                pend.append((9, ["s_getpc_b64 s[44:45]", f"{name}_pc0:", f"s_add_u32 s44, s44, k2_main_kernel-{name}_pc0", "s_addc_u32 s45, s45, 0",
                                 "s_mov_b32 s46, k2_main_kernel_end-k2_main_kernel", "s_mov_b32 s47, 0x00020000",
                                 "s_lshl_b32 s18, s11, 2", "s_add_u32 s18, s18, s14", "s_lshl_b32 s18, s18, 9",
                                 f"v_lshlrev_b32 v{vt}, 7, v{lane}", "s_mov_b64 exec, 15",
                                 f"buffer_load_dword v{dummy}, v{vt}, s[44:47], s18 offen", "s_mov_b64 exec, -1"]))
        else:
            A("s_waitcnt lgkmcnt(4)")
        A(f"v_mfma_f32_32x32x16_bf16 {v(acc[0],16)}, {v(wf[b][0],4)}, {v(X+4*b,4)}, {c_(0)}")
        if not last: rd_x(k + 1); rd_w(k + 1, 0)
        A(f"s_waitcnt lgkmcnt({2 if last else 5})")
        A(f"v_mfma_f32_32x32x16_bf16 {v(acc[1],16)}, {v(wf[b][1],4)}, {v(X+4*b,4)}, {c_(1)}")
        if not last: rd_w(k + 1, 1)
        emit(1)
        A(f"s_waitcnt lgkmcnt({0 if last else 5})")
        A(f"v_mfma_f32_32x32x16_bf16 {v(acc[2],16)}, {v(X+4*b,4)}, {v(wf[b][2],4)}, {c_(2)}")
        if not last: rd_w(k + 1, 2)
        emit(1)
    assert not pend
    stamp(A, 11)
    srd(A, 20, 8, WS_SIZE)
    a0, a1, a2 = axr[0], axr[1], axr[2]
    stp = tp[0]
    A(f"v_mov_b32 v{stp}, -1")
    A(f"v_mov_b32 v{stp+1}, -1")
    A(f"v_lshlrev_b32 v{a1}, 3, v0")
    A("s_lshl_b32 s18, s2, 11")
    A(f"s_add_u32 s18, s18, {hex(WS_SY)}")
    A(f"buffer_store_dwordx2 {v(stp,2)}, v{a1}, s[20:23], s18 offen")
    A("s_lshl_b32 s18, s12, 1")
    A("s_add_u32 s18, s18, s15")
    A("s_lshl_b32 s19, s13, 2")
    A("s_lshl_b32 s28, s16, 1")
    A("s_add_u32 s19, s19, s28")
    A("s_lshl_b32 s28, s19, 6")
    A("s_add_u32 s28, s28, s18")
    A("s_lshl_b32 s28, s28, 10")
    A(f"v_lshlrev_b32 v{a0}, 4, v{lane}")
    A(f"v_add_u32 v{a0}, s28, v{a0}")
    A(f"v_lshrrev_b32 v{a2}, 4, v{ii}")
    A(f"v_lshlrev_b32 v{a2}, 16, v{a2}")
    A(f"v_lshl_add_u32 v{a2}, v{hh}, 8, v{a2}")
    A(f"v_lshl_add_u32 v{a2}, v{l16}, 4, v{a2}")
    A(f"v_add_u32 v{a2}, s28, v{a2}")
    A(f"s_mov_b32 s34, {f32(0.25*LOG2E)}")
    A(f"s_mov_b32 s35, {f32(0.25*LOG2E)}")
    pk = [X + 8, X + 16, X + 24]
    for g in range(3):
        if g == 0:
            for p_ in range(8): A(f"v_pk_mul_f32 {v(acc[0]+2*p_,2)}, {v(acc[0]+2*p_,2)}, s[34:35]")
        for p_ in range(8): A(f"v_cvt_pk_bf16_f32 v{pk[g]+p_}, v{acc[g]+2*p_}, v{acc[g]+2*p_+1}")
        A(f"s_mov_b32 s30, {hex((WS_QF, WS_KF, WS_VF)[g])}")
        if g < 2:
            A(f"s_add_u32 s29, s30, 0x10000")
            A(f"buffer_store_dwordx4 {v(pk[g],4)}, v{a0}, s[20:23], s30 offen")
            A(f"buffer_store_dwordx4 {v(pk[g]+4,4)}, v{a0}, s[20:23], s29 offen")
        else:
            A(f"buffer_store_dwordx4 {v(pk[2],4)}, v{a2}, s[20:23], s30 offen")
            A(f"buffer_store_dwordx4 {v(pk[2]+4,4)}, v{a2}, s[20:23], s30 offen offset:512")
    A(f"v_mov_b32 v{t0}, 0")
    A(f"v_mov_b32 v{t1}, 0")
    for q in range(4):
        A(f"v_dot2_f32_bf16 v{t0}, v{pk[1]+q}, v{pk[1]+q}, v{t0}")
        A(f"v_dot2_f32_bf16 v{t1}, v{pk[1]+4+q}, v{pk[1]+4+q}, v{t1}")
    A(f"v_permlane32_swap_b32 v{t0}, v{t1}")
    A(f"v_add_f32 v{t0}, v{t0}, v{t1}")
    for sh in (8, 4, 2, 1):
        A(f"v_max_f32_dpp v{t0}, v{t0}, v{t0} row_ror:{sh} row_mask:0xf bank_mask:0xf")
    A("s_lshl_b32 s28, s19, 9")
    A("s_lshl_b32 s29, s18, 3")
    A("s_add_u32 s28, s28, s29")
    A(f"v_lshrrev_b32 v{a1}, 4, v{ii}")
    A(f"v_lshlrev_b32 v{a1}, 2, v{a1}")
    A(f"v_lshl_add_u32 v{a1}, v{hh}, 9, v{a1}")
    A(f"v_add_u32 v{a1}, s28, v{a1}")
    A(f"s_mov_b32 s30, {hex(WS_KN)}")
    A("s_mov_b32 exec_lo, 0x00010001")
    A("s_mov_b32 exec_hi, 0x00010001")
    A(f"buffer_store_dword v{t0}, v{a1}, s[20:23], s30 offen")
    stamp_flush(A, name, 0, 12)
    A.label(f"{name}_end")
    A("s_endpgm")
    return A.finish() + kernel_desc(name, V.hi), (name, 256, 256, 163840)
```

```python
import sys, subprocess
sys.path.insert(0, "cdna_kernels")

META_HEAD = """
.amdgpu_metadata
---
amdhsa.version: [1, 2]
amdhsa.kernels:
"""
META_K = """  - .name: {name}
    .symbol: {name}.kd
    .kernarg_segment_size: 16
    .kernarg_segment_align: 8
    .group_segment_fixed_size: 0
    .private_segment_fixed_size: 0
    .wavefront_size: 64
    .sgpr_count: 102
    .vgpr_count: {vgpr}
    .max_flat_workgroup_size: 1024
    .args:
      - {{.name: kernargs, .size: 16, .offset: 0, .value_kind: by_value}}
"""
META_TAIL = """...
.end_amdgpu_metadata
"""

def kernel(name, body, iters, vgpr=128, pre=""):
    s = f"""
.text
.globl {name}
.p2align 8
.type {name},@function
{name}:
    s_load_dwordx2 s[4:5], s[0:1], 0
    s_load_dwordx2 s[6:7], s[0:1], 8
    v_mov_b32 v1, v0
"""
    for i in range(2, vgpr):
        s += f"    v_mov_b32 v{i}, 0x3c003c00\n" if i % 2 else f"    v_mov_b32 v{i}, 0xbf800000\n"
    s += pre
    s += f"""
    s_waitcnt lgkmcnt(0)
    s_mov_b32 s12, {iters}
    s_barrier
    s_memtime s[8:9]
    s_waitcnt lgkmcnt(0)
.p2align 6
L_{name}:
{body}
    s_sub_u32 s12, s12, 1
    s_cmp_lg_u32 s12, 0
    s_cbranch_scc1 L_{name}
    s_nop 15
    s_nop 15
    s_memtime s[10:11]
    s_waitcnt lgkmcnt(0)
    s_sub_u32 s10, s10, s8
    s_mov_b32 s16, s4
    s_mov_b32 s17, s5
    s_mov_b32 s18, 0x100000
    s_mov_b32 s19, 0x00020000
    v_lshrrev_b32 v2, 6, v1
    s_lshl_b32 s3, s2, 4
    v_add_u32 v2, s3, v2
    v_lshlrev_b32 v2, 2, v2
    v_mov_b32 v3, s10
    v_and_b32 v4, 63, v1
    v_cmp_eq_u32 vcc, 0, v4
    s_and_saveexec_b64 s[20:21], vcc
    buffer_store_dword v3, v2, s[16:19], 0 offen
    s_waitcnt vmcnt(0)
    s_endpgm
.section .rodata,"a"
.p2align 6
.amdhsa_kernel {name}
  .amdhsa_next_free_vgpr {vgpr}
  .amdhsa_next_free_sgpr 102
  .amdhsa_accum_offset {vgpr}
  .amdhsa_group_segment_fixed_size 0
  .amdhsa_kernarg_size 16
  .amdhsa_user_sgpr_count 2
  .amdhsa_user_sgpr_kernarg_segment_ptr 1
  .amdhsa_system_sgpr_workgroup_id_x 1
.end_amdhsa_kernel
"""
    return s

def build(kernels, out):
    s = '.amdgcn_target "amdgcn-amd-amdhsa--gfx950"\n'
    for k in kernels:
        s += kernel(*k)
    s += META_HEAD + "".join(META_K.format(name=k[0], vgpr=k[3]) for k in kernels) + META_TAIL
    open(out + ".s", "w").write(s)
    r = subprocess.run(["clang", "-x", "assembler", "-target", "amdgcn-amd-amdhsa", "-mcpu=gfx950", out + ".s", "-o", out + ".co"], capture_output=True, text=True)
    if r.returncode:
        print(r.stderr[:4000]); sys.exit(1)
    open(out + ".names", "w").write("\n".join(f"{k[0]} {k[2]}" for k in kernels))
```

```python
from mbgen import *
PRE = """
    s_waitcnt lgkmcnt(0)
    s_mov_b32 s24, s6
    s_mov_b32 s25, s7
    s_mov_b32 s26, 0x1000000
    s_mov_b32 s27, 0x00020000
    v_lshlrev_b32 v2, 4, v1
    v_mov_b32 v3, 0
    s_mov_b32 s30, 0
"""
mf = lambda d, a, b, c: f"v_mfma_f32_32x32x16_bf16 v[{d}:{d+15}], v[{a}:{a+3}], v[{b}:{b+3}], v[{c}:{c+15}]"
def unit(pos, ld):
    S = 40
    seq = [mf(64,4,56,96)] + ["e0","e1","e2", mf(80,4,12,80), "c0","e3","e4","c2","e5","e6","c4","e7","e8","c6","e9","e10", mf(80,4,8,80), "c8","e11","e12","c10","e13","e14","e15","c12","c14"]
    out = []
    for i, x in enumerate(seq):
        if x[0] == "e": out.append(f"v_exp_f32 v{16+int(x[1:])}, v{S+int(x[1:])}")
        elif x[0] == "c": k = int(x[1:]); out.append(f"v_cvt_pk_bf16_f32 v{8+k//2}, v{16+k}, v{17+k}")
        else: out.append(x)
        if i == pos: out.append(ld)
    return "\n".join("    " + l for l in out)
K = []
LD = {"buf": "buffer_load_dwordx4 v[112:115], v2, s[24:27], s30 offen",
      "glob": "global_load_dwordx4 v[112:115], v2, s[6:7]",
      "buf1": "buffer_load_dword v112, v2, s[24:27], s30 offen",
      "salu": "s_add_u32 s40, s41, 1"}
K.append(("none", unit(-1, ""), 100, 128, PRE))
for nm, ld in LD.items():
    for pos in (0, 1, 4, 5, 7, 16, 25):
        K.append((f"{nm}_p{pos}", unit(pos, ld), 100, 128, PRE))
K = [(n, "\n".join([b]*15) + "\n" + b + "\n    s_waitcnt vmcnt(20)", 100, v, p) for (n,b,i,v,p) in K]
build(K, "mb14")
```
